```python
import torch

def _softmax(x, axis=-1):
    return torch.softmax(x, dim=axis)

def _gelu(x):
    return torch.nn.functional.gelu(x, approximate='tanh')

def _silu(x):
    return torch.nn.functional.silu(x)

def _sigmoid(x):
    return torch.sigmoid(x)

def _layernorm(x, axis=-1, eps=1e-05):
    m = x.mean(dim=axis, keepdim=True)
    v = x.var(dim=axis, keepdim=True, unbiased=False)
    return (x - m) / torch.sqrt(v + eps)

def _scatter_add(tgt, idx, src, axis=0):
    return tgt.clone().index_add_(axis, idx, src)

def _segment_sum(src, seg, n):
    out = torch.zeros((n,) + src.shape[1:], dtype=src.dtype)
    return out.index_add_(0, seg, src)

def _pad(x, pw):
    flat = tuple((v for pair in reversed(pw) for v in pair))
    return torch.nn.functional.pad(x, flat)
kernel_name = 'adaLN_cond__sliding_block_cached__glu_gated_reglu__decode'

def setup_inputs():

    _w = lambda a: (lambda t: t.to(torch.bfloat16) if t.is_floating_point() else t)(torch.as_tensor(a))

    def _A_setup():
        B, Sq, D = (4, 1, 640)
        Hq, Hkv, Sk, Dh = (32, 32, 4096, 192)
        assert Hq % Hkv == 0, (Hq, Hkv)
        return {'x': _w((lambda *s: torch.randn(*s, dtype=torch.bfloat16) * 0.1)(B, Sq, D)), 'k_cache': _w((lambda *s: torch.randn(*s, dtype=torch.bfloat16) * 0.8)(B, Hkv, Sk, Dh)), 'v_cache': _w((lambda *s: torch.randn(*s, dtype=torch.bfloat16) * 3.2)(B, Hkv, Sk, Dh)), 'wq': _w((lambda *s: torch.randn(*s, dtype=torch.bfloat16) * 0.8)(D, Hq * Dh) * D ** (-0.5)), 'wo': _w((lambda *s: torch.randn(*s, dtype=torch.bfloat16) * 3.2)(Hq * Dh, D) * (Hq * Dh) ** (-0.5))}
    _A_in = _A_setup()

    def _B_setup():
        B, S, D, F = (4, 1, 640, 1536)
        return {'x': _w((lambda *s: torch.randn(*s, dtype=torch.bfloat16) * 0.1)(B, S, D)), 'W_gate': _w((lambda *s: torch.randn(*s, dtype=torch.bfloat16) * 3.2)(D, F) * (2.0 / D) ** 0.5), 'W_up': _w((lambda *s: torch.randn(*s, dtype=torch.bfloat16) * 3.2)(D, F) * (2.0 / D) ** 0.5), 'W_down': _w((lambda *s: torch.randn(*s, dtype=torch.bfloat16) * 3.2)(F, D) * (1.0 / F) ** 0.5)}
    _B_in = _B_setup()
    return {'A_x': _A_in['x'], 'A_k_cache': _A_in['k_cache'], 'A_v_cache': _A_in['v_cache'], 'A_wq': _A_in['wq'], 'A_wo': _A_in['wo'], 'B_x': _B_in['x'], 'B_W_gate': _B_in['W_gate'], 'B_W_up': _B_in['W_up'], 'B_W_down': _B_in['W_down'], 'c': _w((lambda *s: torch.randn(*s, dtype=torch.bfloat16) * 0.4)(4, 640) * 8.0), 'w_mod': _w((lambda *s: torch.randn(*s, dtype=torch.bfloat16) * 0.4)(640, 6 * 640) * 640 ** (-0.5) * 8.0)}

def reference(A_x, A_k_cache, A_v_cache, A_wq, A_wo, B_x, B_W_gate, B_W_up, B_W_down, c, w_mod):

    def _A_ref(x, k_cache, v_cache, wq, wo):
        B, Sq, D = x.shape
        Hq, Dh = (32, 192)
        Hkv, Sk = (k_cache.shape[1], k_cache.shape[2])
        W = min(4096, max(256, Sk // 4))
        rep = Hq // Hkv
        q = (lambda x, *d: x.permute(*d))((x @ wq).reshape(B, Sq, Hq, Dh), 0, 2, 1, 3)
        k = (lambda x, n, axis: torch.repeat_interleave(x, n, dim=axis))(k_cache[:, :, Sk - W:, :], rep, axis=1)
        v = (lambda x, n, axis: torch.repeat_interleave(x, n, dim=axis))(v_cache[:, :, Sk - W:, :], rep, axis=1)
        scores = torch.einsum('bhqd,bhkd->bhqk', q, k) * Dh ** (-0.5)
        p = _softmax(scores, axis=-1)
        o = torch.einsum('bhqk,bhkd->bhqd', p, v)
        return (lambda x, *d: x.permute(*d))(o, 0, 2, 1, 3).reshape(B, Sq, Hq * Dh) @ wo

    def _B_ref(x, W_gate, W_up, W_down):
        gate = torch.einsum('bsd,df->bsf', x, W_gate)
        up = torch.einsum('bsd,df->bsf', x, W_up)
        gate = gate * (lambda x, dt: x.to(dt))(gate > 0, gate.dtype)
        h = gate * up
        return torch.einsum('bsf,fd->bsd', h, W_down)
    x = A_x
    mod = (_silu(c) @ w_mod).reshape(c.shape[0], 6, 1, -1)
    sa, ca, ga, sb, cb, gb = (mod[:, 0].clone(), mod[:, 1].clone(), mod[:, 2].clone(), mod[:, 3].clone(), mod[:, 4].clone(), mod[:, 5].clone())
    h = _layernorm(x, axis=-1) * (1 + ca) + sa
    x = x + ga * _A_ref(h, A_k_cache, A_v_cache, A_wq, A_wo)
    h = _layernorm(x, axis=-1) * (1 + cb) + sb
    x = x + gb * _B_ref(h, B_W_gate, B_W_up, B_W_down)
    return x
```

```python
import re
NAME = "adaLN_cond__sliding_block_cached__glu_gated_reglu__decode"

TRANS = ("v_exp_f32", "v_log_f32", "v_rcp_f32", "v_rsq_f32", "v_sqrt_f32", "v_sin_f32", "v_cos_f32", "v_rcp_iflag_f32")

def _regs(tok):
    tok = tok.strip()
    tok = re.sub(r"^-", "", tok)
    m = re.match(r"^abs\((.*)\)$", tok)
    if m: tok = m.group(1)
    m = re.match(r"^\|(.*)\|$", tok)
    if m: tok = m.group(1)
    m = re.match(r"^([vs])(\d+)$", tok)
    if m: return [(m.group(1), int(m.group(2)))]
    m = re.match(r"^([vs])\[(\d+):(\d+)\]$", tok)
    if m: return [(m.group(1), i) for i in range(int(m.group(2)), int(m.group(3)) + 1)]
    if tok in ("vcc", "vcc_lo", "vcc_hi"): return [("x", "vcc")]
    if tok in ("exec", "exec_lo", "exec_hi"): return [("x", "exec")]
    if tok == "m0": return [("x", "m0")]
    return []

def parse(line):
    s = line.split(";")[0].strip()
    if not s or s.endswith(":") or s.startswith("."): return None
    s = re.sub(r"quad_perm:\[[^\]]*\]", "quad_perm", s)
    parts = s.split(None, 1)
    op = parts[0]
    rest = parts[1] if len(parts) > 1 else ""
    ops = [o.strip() for o in rest.split(",")] if rest else []
    mods = ""
    if ops:
        sp = ops[-1].split(None, 1)
        if len(sp) > 1:
            ops[-1] = sp[0]; mods = sp[1]
    return op, ops, mods

class Haz:
    def __init__(self):
        self.t = 0
        self.valu_w = {}
        self.trans_w = {}
        self.mfma_w = {}
        self.mfma_c = {}
        self.sg_w = {}
        self.m0_w = -100
        self.st_data = {}
    def need(self, line):
        p = parse(line)
        if p is None: return 0, None
        op, ops, mods = p
        need = 0
        def req(tw, n):
            nonlocal need
            have = self.t - tw - 1
            if have < n: need = max(need, n - have)
        info = dict(op=op, ops=ops, mods=mods)
        is_mfma = op.startswith("v_mfma")
        is_valu = op.startswith("v_") and not is_mfma
        is_vmem = op.startswith("buffer_") or op.startswith("global_")
        is_ds = op.startswith("ds_")
        dst, src = [], []
        if is_mfma:
            dst = _regs(ops[0]); a = _regs(ops[1]); b = _regs(ops[2]); c = _regs(ops[3])
            for r in a + b + c:
                if r in self.valu_w: req(self.valu_w[r], 2)
            for r in a + b:
                if r in self.mfma_w: req(self.mfma_w[r][0], 8)
            for r in c:
                if r in self.mfma_w:
                    if self.mfma_w[r][1] != tuple(c): req(self.mfma_w[r][0], 6)
            for r in dst:
                if r in self.mfma_w and self.mfma_w[r][1] != tuple(c): req(self.mfma_w[r][0], 8)
            info.update(dst=dst, c=c)
        elif is_valu:
            dpp = ("quad_perm" in mods) or ("row_" in mods) or op.endswith("_dpp") or ("wave_" in mods)
            if op.startswith("v_cmp"):
                dst = _regs(ops[0]); src = sum((_regs(o) for o in ops[1:]), [])
            elif op.startswith("v_permlane") and "swap" in op:
                dst = _regs(ops[0]) + _regs(ops[1]); src = list(dst)
                for r in src:
                    if r in self.valu_w: req(self.valu_w[r], 2)
            elif op.startswith("v_readfirstlane") or op.startswith("v_readlane"):
                dst = _regs(ops[0]); src = sum((_regs(o) for o in ops[1:]), [])
                for r in _regs(ops[1]):
                    if r in self.valu_w: req(self.valu_w[r], 1)
                for o in ops[2:]:
                    for r in _regs(o):
                        if r in self.sg_w: req(self.sg_w[r], 4)
            elif re.match(r"v_(add|sub|subrev|addc|subb)_co_u32", op):
                dst = _regs(ops[0]) + _regs(ops[1]); src = sum((_regs(o) for o in ops[2:]), [])
            else:
                dst = _regs(ops[0]); src = sum((_regs(o) for o in ops[1:]), [])
                if op.startswith("v_fmac") or op.startswith("v_pk_fmac") or op.startswith("v_dot2c") or dpp:
                    src = src + dst
                if op.startswith("v_cndmask") and len(ops) == 3:
                    src = src + [("x", "vcc")]
            if dpp:
                for r in _regs(ops[1]):
                    if r in self.valu_w: req(self.valu_w[r], 2)
            for r in src:
                if r in self.mfma_w: req(self.mfma_w[r][0], 8)
                if r in self.trans_w and not op.startswith(TRANS): req(self.trans_w[r], 1)
                if r in self.sg_w: req(self.sg_w[r], 2)
            for r in dst:
                if r in self.mfma_w: req(self.mfma_w[r][0], 8)
                if r in self.mfma_c: req(self.mfma_c[r], 3)
                if r in self.st_data: req(self.st_data[r], 2)
            info.update(dst=dst)
        elif is_vmem or is_ds:
            allr = sum((_regs(o) for o in ops), [])
            for r in allr:
                if r in self.mfma_w: req(self.mfma_w[r][0], 8)
                if r[0] != "v" and r in self.sg_w: req(self.sg_w[r], 5)
            if is_vmem and " lds" in (" " + mods): req(self.m0_w, 1)
            if is_vmem and ("load" in op) and " lds" not in (" " + mods):
                for r in _regs(ops[0]):
                    if r in self.st_data: req(self.st_data[r], 1)
        return need, info
    def commit(self, line, info):
        p = parse(line)
        if p is None: return
        op, ops, mods = p
        if op == "s_nop":
            self.t += int(ops[0], 0) + 1
            return
        if op.startswith("v_mfma"):
            for r in info["dst"]:
                self.mfma_w[r] = (self.t, tuple(info["dst"])); self.valu_w.pop(r, None); self.trans_w.pop(r, None)
            for r in info["c"]: self.mfma_c[r] = self.t
        elif op.startswith("v_"):
            for r in info["dst"]:
                if r[0] == "v":
                    self.valu_w[r] = self.t; self.mfma_w.pop(r, None)
                    if op.startswith(TRANS): self.trans_w[r] = self.t
                    else: self.trans_w.pop(r, None)
                else:
                    self.sg_w[r] = self.t
        elif op.startswith("s_"):
            if ops:
                for r in _regs(ops[0]):
                    if r == ("x", "m0") and not op.startswith("s_cmp"): self.m0_w = self.t
                    if not op.startswith("s_cmp"): self.sg_w.pop(r, None)
        elif op.startswith("buffer_store") or op.startswith("global_store"):
            if "x3" in op or "x4" in op:
                d = ops[0] if op.startswith("buffer") else ops[1]
                for r in _regs(d): self.st_data[r] = self.t
        elif op.startswith("buffer_load") or op.startswith("ds_read") or op.startswith("global_load"):
            if " lds" not in (" " + mods):
                for r in _regs(ops[0]):
                    self.valu_w.pop(r, None); self.mfma_w.pop(r, None); self.trans_w.pop(r, None)
        self.t += 1

class Asm:
    def __init__(self):
        self.L = []
        self.uid = 0
        self.pre = []
    def __call__(self, s):
        for line in s.strip("\n").split("\n"):
            t = line.strip()
            if not t: continue
            self.L.append(t if t.endswith(":") else "    " + t)
    def label(self, base="L"):
        self.uid += 1
        return f"{base}_{self.uid}"
    def header(self, grid, block, lds, comments=()):
        self.pre = list(comments) + [f"; @launch grid=({grid},1,1) block=({block},1,1) lds={lds}",
                   '.amdgcn_target "amdgcn-amd-amdhsa--gfx950"', ".text", f".globl {NAME}_kernel", ".p2align 8",
                   f".type {NAME}_kernel,@function", f"{NAME}_kernel:"]
    def footer(self, vgpr, sgpr=96):
        self.post = ['.section .rodata,"a"', ".p2align 6", f".amdhsa_kernel {NAME}_kernel",
                   f"  .amdhsa_next_free_vgpr {vgpr}", f"  .amdhsa_next_free_sgpr {sgpr}", f"  .amdhsa_accum_offset {(vgpr+3)//4*4}",
                   "  .amdhsa_group_segment_fixed_size 0", "  .amdhsa_kernarg_size 112", "  .amdhsa_user_sgpr_count 2",
                   "  .amdhsa_user_sgpr_kernarg_segment_ptr 1", "  .amdhsa_system_sgpr_workgroup_id_x 1", ".end_amdhsa_kernel"]
    def write(self, path, haz=True):
        out = []
        h = Haz()
        nn = 0
        for line in self.L:
            if haz:
                n, info = h.need(line)
                if n > 0:
                    nop = f"    s_nop {n-1}"
                    out.append(nop); h.commit(nop, None); nn += 1
                h.commit(line, info)
            out.append(line)
        open(path, "w").write("\n".join(self.pre + out + self.post) + "\n")
        return nn
```

```python
import sys
from asmlib import *

MODP = 0x000000
QP   = 0x040000
OP   = 0x0C0000
ML   = 0x0F0000
XA   = 0x0F1000
ST   = 0x0F5000
AM   = 0x100000
EM   = 0x140000
WSEND = 0x230000
CLR0 = 0x040000
TSOFF = 0x2000000
L_WM = 0
L_WQ = 20480
L_WO = 53248
L_WG = 86016
L_WU = 106496
L_WD = 126976
L_RED = 147456
L_MISC = 159744
L_Q = L_MISC
L_MLW = L_MISC + 512
L_HB = L_MISC + 1024
L_RS = L_MISC + 2048
L_FR = L_WM
LDS_TOTAL = 163840
LOG2E = 0x3FB8AA3B
SCALE = 0x3D93CD3A
NFFN = 96
RED0 = 216
SPIN = 200000

def gen(out, NV1=4, ts=False, comments=()):
    a = Asm()
    a.header(256, 512, LDS_TOTAL, comments)
    sK, sV, sWS, sA, sB, sC, sTS = "s[44:47]", "s[48:51]", "s[52:55]", "s[56:59]", "s[60:63]", "s[64:67]", "s[68:71]"
    mODD, mNHI, mQ1, mQ2, mQ3, mRED = "s[72:73]", "s[74:75]", "s[76:77]", "s[78:79]", "s[80:81]", "s[82:83]"
    def srd(base, ptr, size):
        a(f"s_mov_b32 s{base}, s{ptr}\ns_mov_b32 s{base+1}, s{ptr+1}\ns_mov_b32 s{base+2}, {size}\ns_mov_b32 s{base+3}, 0x20000")
    def TS(k):
        if ts:
            a(f"s_memrealtime s[86:87]\ns_waitcnt lgkmcnt(0)\nv_writelane_b32 v63, s86, {k}")
    def xrow_sum(r, t, op="v_add_f32"):
        a(f"v_mov_b32 v{t}, v{r}\nv_permlane16_swap_b32 v{r}, v{t}\n{op} v{r}, v{r}, v{t}")
        a(f"v_mov_b32 v{t}, v{r}\nv_permlane32_swap_b32 v{r}, v{t}\n{op} v{r}, v{r}, v{t}")
    def ror(r, n, op="v_add_f32"):
        a(f"{op}_dpp v{r}, v{r}, v{r} row_ror:{n} row_mask:0xf bank_mask:0xf")
    def rnd2(x, y, p):
        a(f"v_cvt_pk_bf16_f32 v{p}, v{x}, v{y}\nv_lshlrev_b32 v{x}, 16, v{p}\nv_and_b32 v{y}, 0xffff0000, v{p}")
    def rnd1(x):
        a(f"v_cvt_pk_bf16_f32 v{x}, v{x}, v{x}\nv_and_b32 v{x}, 0xffff0000, v{x}")
    def chk(regs, t, retry, done_cnt="s84"):
        regs = list(regs)
        first = True
        i = 0
        while i < len(regs):
            if first:
                if len(regs) >= 3:
                    a(f"v_max3_u32 v{t}, v{regs[0]}, v{regs[1]}, v{regs[2]}"); i = 3
                elif len(regs) == 2:
                    a(f"v_max_u32 v{t}, v{regs[0]}, v{regs[1]}"); i = 2
                else:
                    a(f"v_mov_b32 v{t}, v{regs[0]}"); i = 1
                first = False
            elif i + 1 < len(regs):
                a(f"v_max3_u32 v{t}, v{t}, v{regs[i]}, v{regs[i+1]}"); i += 2
            else:
                a(f"v_max_u32 v{t}, v{t}, v{regs[i]}"); i += 1
        lab = a.label("L_ok")
        a(f"""
        v_cmp_eq_u32 vcc, -1, v{t}
        s_cbranch_vccz {lab}
        s_sub_u32 {done_cnt}, {done_cnt}, 1
        s_cmp_lg_u32 {done_cnt}, 0
        s_cbranch_scc1 {retry}
        {lab}:
        """)
    def sel_q4(dsts, sets):
        for v in range(len(dsts)):
            a(f"v_cndmask_b32 v{dsts[v]}, v{sets[0][v]}, v{sets[1][v]}, {mQ1}")
            a(f"v_cndmask_b32 v{dsts[v]}, v{dsts[v]}, v{sets[2][v]}, {mQ2}")
            a(f"v_cndmask_b32 v{dsts[v]}, v{dsts[v]}, v{sets[3][v]}, {mQ3}")

    a(f"""
    s_cmp_ge_u32 s2, 256
    s_cbranch_scc1 L_exit
    s_load_dwordx16 s[16:31], s[0:1], 0
    s_load_dwordx8 s[32:39], s[0:1], 64
    s_load_dwordx4 s[40:43], s[0:1], 96
    v_and_b32 v1, 63, v0
    v_lshrrev_b32 v6, 6, v0
    v_readfirstlane_b32 s3, v6
    v_and_b32 v4, 15, v1
    v_lshrrev_b32 v5, 4, v1
    s_and_b32 s8, s2, 7
    s_lshr_b32 s9, s2, 3
    s_and_b32 s10, s9, 3
    s_lshl_b32 s4, s8, 2
    s_add_u32 s4, s4, s10          ; head
    s_lshr_b32 s5, s9, 2
    s_and_b32 s5, s5, 3            ; b
    s_lshr_b32 s6, s9, 4           ; split
    s_lshl_b32 s7, s5, 5
    s_add_u32 s7, s7, s4
    s_lshl_b32 s7, s7, 12
    s_add_u32 s7, s7, 3072
    s_lshl_b32 s10, s6, 9
    s_add_u32 s7, s7, s10
    s_lshl_b32 s10, s3, 6
    s_add_u32 s7, s7, s10
    s_mul_i32 s7, s7, 384
    v_lshrrev_b32 v6, 1, v4
    v_mul_u32_u24 v6, 384, v6
    v_and_b32 v7, 1, v4
    v_lshl_add_u32 v7, v7, 2, v5
    v_lshl_add_u32 v2, v7, 4, v6
    v_lshrrev_b32 v6, 3, v1
    v_mul_u32_u24 v6, 384, v6
    v_and_b32 v7, 7, v1
    v_lshl_add_u32 v3, v7, 4, v6
    s_mov_b32 s72, 0xaaaaaaaa
    s_mov_b32 s73, 0xaaaaaaaa
    s_mov_b32 s74, 0xff00ff00
    s_mov_b32 s75, 0xff00ff00
    s_mov_b32 s76, 0xffff0000
    s_mov_b32 s77, 0
    s_mov_b32 s78, 0
    s_mov_b32 s79, 0x0000ffff
    s_mov_b32 s80, 0
    s_mov_b32 s81, 0xffff0000
    s_mov_b32 s82, 0x00ff00ff
    s_mov_b32 s83, 0xff00ff00
    s_mov_b32 s84, {SPIN}
    s_waitcnt lgkmcnt(0)
    """)
    srd(44, 18, 201326592)
    srd(48, 20, 201326592)
    srd(52, 42, WSEND)
    if ts:
        srd(68, 42, 0x4000000)
        a("v_mov_b32 v63, 0")
    TS(0)
    a("s_cmp_eq_u32 s3, 0\ns_cbranch_scc1 L_helper")

    KB, VB = 64, 160
    def kv_loads(which, tiles):
        base = KB if which == 'k' else VB
        sr = sK if which == 'k' else sV
        vo = 2 if which == 'k' else 3
        last = None
        for T in tiles:
            pair = T // 2
            if pair != last:
                a(f"s_add_u32 s8, s7, {pair*6144}"); last = pair
            for s in range(3):
                r = base + T * 12 + s * 4
                a(f"buffer_load_dwordx4 v[{r}:{r+3}], v{vo}, {sr}, s8 offen offset:{(T%2)*3072 + s*128} nt")
    def wo_dma():
        srd(56, 24, 7864320)
        a(f"""
        s_mul_i32 s9, s2, 6554
        s_lshr_b32 s9, s9, 16          ; ob = u/10
        s_mul_i32 s10, s9, 10
        s_sub_u32 s10, s2, s10         ; oc
        s_lshl_b32 s9, s9, 8
        s_lshl_b32 s11, s3, 5
        s_add_u32 s9, s9, s11
        s_mul_i32 s9, s9, 1280
        s_lshl_b32 s10, s10, 7
        s_add_u32 s9, s9, s10
        v_lshrrev_b32 v6, 3, v1
        v_mul_u32_u24 v6, 1280, v6
        v_and_b32 v7, 7, v1
        v_lshl_add_u32 v6, v7, 4, v6
        s_lshl_b32 s10, s3, 12
        s_add_u32 s10, s10, {L_WO}
        """)
        for i in range(4):
            a(f"s_mov_b32 m0, s10")
            a(f"buffer_load_dwordx4 v6, {sA}, s9 offen nt lds")
            if i < 3:
                a(f"s_add_u32 s9, s9, {8*1280}\ns_add_u32 s10, s10, 1024")

    def attention(pre_k_outstanding_after, nv1, helper):
        a(f"""
        v_and_b32 v6, 1, v4
        v_lshl_add_u32 v6, v6, 2, v5
        v_lshlrev_b32 v6, 4, v6
        v_add_u32 v6, {L_Q}, v6
        ds_read_b128 v[8:11], v6
        ds_read_b128 v[12:15], v6 offset:128
        ds_read_b128 v[16:19], v6 offset:256
        """)
        if helper:
            a("s_setprio 3")
            kv_loads('k', range(8))
            a("s_setprio 1")
            kv_loads('v', range(nv1))
        a(f"""
        v_and_b32 v6, 1, v4
        v_mov_b32 v7, 0xffff
        v_lshlrev_b32 v6, 4, v6
        v_lshlrev_b32 v7, v6, v7
        v_bfe_u32 v6, v4, 1, 2            ; r
        v_cmp_eq_u32 vcc, 0, v6
        v_cndmask_b32 v52, 0, v7, vcc
        v_cmp_eq_u32 vcc, 1, v6
        v_cndmask_b32 v53, 0, v7, vcc
        v_cmp_eq_u32 vcc, 2, v6
        v_cndmask_b32 v54, 0, v7, vcc
        v_cmp_eq_u32 vcc, 3, v6
        v_cndmask_b32 v55, 0, v7, vcc
        s_waitcnt lgkmcnt(0)
        """)
        tot = 24 + 3 * nv1
        for T in range(8):
            a(f"s_waitcnt vmcnt({tot - 3*(T+1)})")
            D = 20 + 4 * T
            for s in range(3):
                k = KB + T * 12 + s * 4
                c = "0" if s == 0 else f"v[{D}:{D+3}]"
                a(f"v_mfma_f32_16x16x32_bf16 v[{D}:{D+3}], v[{k}:{k+3}], v[{8+4*s}:{11+4*s}], {c}")
        for T in range(8):
            D = 20 + 4 * T
            a(f"v_cndmask_b32 v{D}, v{D}, v{D+1}, {mODD}")
            a(f"v_cndmask_b32 v{D+2}, v{D+2}, v{D+3}, {mODD}")
            a(f"v_cndmask_b32 v{D}, v{D}, v{D+2}, {mNHI}")
        S = [20 + 4 * T for T in range(8)]
        for T in range(8):
            a(f"v_add_f32_dpp v{S[T]}, v{S[T]}, v{S[T]} quad_perm:[1,0,3,2] row_mask:0xf bank_mask:0xf")
        for T in range(0, 8, 2):
            rnd2(S[T], S[T+1], S[T] + 1)
        for T in range(8):
            a(f"v_mul_f32 v{S[T]}, {hex(SCALE)}, v{S[T]}")
        for T in range(0, 8, 2):
            rnd2(S[T], S[T+1], S[T] + 1)
        a(f"""
        v_max3_f32 v56, v{S[0]}, v{S[1]}, v{S[2]}
        v_max3_f32 v56, v56, v{S[3]}, v{S[4]}
        v_max3_f32 v56, v56, v{S[5]}, v{S[6]}
        v_max_f32 v56, v56, v{S[7]}
        """)
        ror(56, 8, "v_max_f32")
        xrow_sum(56, 58, "v_max_f32")
        for T in range(8):
            a(f"v_sub_f32 v{S[T]}, v{S[T]}, v56")
        for T in range(8):
            a(f"v_mul_f32 v{S[T]}, {hex(LOG2E)}, v{S[T]}")
        for T in range(8):
            a(f"v_exp_f32 v{S[T]}, v{S[T]}")
        a(f"v_add_f32 v57, v{S[0]}, v{S[1]}")
        for T in range(2, 8):
            a(f"v_add_f32 v57, v57, v{S[T]}")
        for T in range(8):
            a(f"v_cvt_pk_bf16_f32 v{8+T}, v{S[T]}, v{S[T]}")
        ror(57, 8)
        xrow_sum(57, 58)
        a(f"""
        s_lshl_b32 s8, s3, 3
        s_add_u32 s8, s8, {L_MLW}
        v_mov_b32 v6, s8
        ds_write_b64 v6, v[56:57]
        """)
        TS(2)
        a("s_setprio 1")
        kv_loads('v', range(nv1, 8))
        a("s_setprio 0")
        wo_dma()
        TS(3)
        for T in range(8):
            A = 32 + 4 * (T % 2)
            for r in range(4):
                a(f"v_and_b32 v{A+r}, v{8+T}, v{52+r}")
            a(f"s_waitcnt vmcnt({3*(7-T) + 4})")
            for s in range(3):
                v = VB + T * 12 + s * 4
                D = 20 + 4 * s
                c = "0" if T == 0 else f"v[{D}:{D+3}]"
                a(f"v_mfma_f32_16x16x32_bf16 v[{D}:{D+3}], v[{A}:{A+3}], v[{v}:{v+3}], {c}")
        a("s_branch L_tail")

    a("s_setprio 2")
    kv_loads('k', range(8))
    a("s_setprio 1")
    kv_loads('v', range(NV1))
    a("s_setprio 0")
    TS(1)
    a("s_barrier")
    attention(None, NV1, False)

    a("L_helper:")
    a("s_setprio 3")
    a("s_cmp_ge_u32 s2, 240\ns_cbranch_scc1 L_h_nounit1")
    srd(56, 36, 4915200)
    srd(60, 22, 7864320)
    srd(64, 34, 5120)
    a(f"""
    s_mul_i32 s9, s2, 1093
    s_lshr_b32 s9, s9, 16          ; ks = u/60
    s_mul_i32 s10, s9, 60
    s_sub_u32 s10, s2, s10         ; cbk
    s_mov_b32 s88, s9              ; ks
    s_mov_b32 s89, s10             ; cbk
    v_and_b32 v6, 3, v4
    v_mul_u32_u24 v6, 1280, v6
    v_lshl_add_u32 v6, v5, 4, v6
    s_mul_i32 s11, s9, 320
    """)
    for t in range(5):
        a(f"buffer_load_dwordx4 v[{64+4*t}:{67+4*t}], v6, {sC}, s11 offen offset:{t*64}")
    a(f"""
    v_lshrrev_b32 v6, 3, v1
    v_mul_u32_u24 v6, 7680, v6
    v_and_b32 v7, 7, v1
    v_lshl_add_u32 v6, v7, 4, v6
    s_mul_i32 s11, s9, {160*7680}
    s_lshl_b32 s12, s10, 7
    s_add_u32 s11, s11, s12
    """)
    for i in range(20):
        a(f"s_mov_b32 m0, {L_WM + i*1024}")
        a(f"buffer_load_dwordx4 v6, {sA}, s11 offen nt lds")
        if i < 19: a(f"s_add_u32 s11, s11, {8*7680}")
    srd(64, 16, 5120)
    a(f"""
    s_mul_i32 s9, s2, 1366
    s_lshr_b32 s9, s9, 16          ; kq = u/48
    s_mul_i32 s10, s9, 48
    s_sub_u32 s10, s2, s10         ; qb
    s_mov_b32 s90, s9              ; kq
    s_mov_b32 s91, s10             ; qb
    v_and_b32 v6, 3, v4            ; b
    v_lshrrev_b32 v7, 2, v4        ; tq
    v_mul_u32_u24 v8, 1280, v6
    v_mul_u32_u24 v9, 320, v7
    v_add_u32 v8, v8, v9
    v_lshl_add_u32 v8, v5, 4, v8   ; b*1280 + tq*320 + g*16
    """)
    for i in range(5):
        a(f"buffer_load_dwordx4 v[{84+4*i}:{87+4*i}], v8, {sC}, 0 offen offset:{i*64}")
    a(f"""
    v_mul_u32_u24 v8, 1280, v6
    v_lshl_add_u32 v8, v7, 6, v8
    v_lshl_add_u32 v8, v5, 4, v8   ; b*1280 + tq*64 + g*16
    s_lshl_b32 s11, s9, 8
    buffer_load_dwordx4 v[104:107], v8, {sC}, s11 offen
    v_mul_u32_u24 v8, 12288, v5
    v_lshl_add_u32 v8, v4, 4, v8
    s_mul_i32 s11, s9, {128*12288}
    s_lshl_b32 s12, s10, 8
    s_add_u32 s11, s11, s12
    """)
    for i in range(32):
        a(f"s_mov_b32 m0, {L_WQ + i*1024}")
        a(f"buffer_load_dwordx4 v8, {sB}, s11 offen nt lds")
        if i < 31: a(f"s_add_u32 s11, s11, {4*12288}")
    a("s_waitcnt vmcnt(58)")
    for t in range(5):
        for r in range(4):
            src = 64 + 4 * t + r
            a(f"""
            v_lshlrev_b32 v8, 16, v{src}
            v_and_b32 v9, 0xffff0000, v{src}
            v_mul_f32 v10, {hex(LOG2E | 0x80000000)}, v8
            v_mul_f32 v11, {hex(LOG2E | 0x80000000)}, v9
            v_exp_f32 v10, v10
            v_exp_f32 v11, v11
            v_add_f32 v10, 1.0, v10
            v_add_f32 v11, 1.0, v11
            v_rcp_f32 v10, v10
            v_rcp_f32 v11, v11
            v_mul_f32 v8, v8, v10
            v_mul_f32 v9, v9, v11
            v_cvt_pk_bf16_f32 v{src}, v8, v9
            """)
    a(f"""
    v_lshrrev_b32 v6, 2, v4
    v_and_b32 v7, 3, v4
    v_lshl_add_u32 v6, v5, 3, v6   ; 8g + r
    v_lshlrev_b32 v8, 7, v6
    v_lshl_add_u32 v8, v7, 3, v8
    s_waitcnt vmcnt(38)
    """)
    for t in range(5):
        for nt in range(4):
            r = 112 + (t * 4 + nt) * 4
            off = L_WM + t * 4096 + nt * 32
            a(f"ds_read_b64_tr_b16 v[{r}:{r+1}], v8 offset:{off}")
            a(f"ds_read_b64_tr_b16 v[{r+2}:{r+3}], v8 offset:{off+512}")
        a("s_waitcnt lgkmcnt(0)")
    for t in range(5):
        for nt in range(4):
            r = 112 + (t * 4 + nt) * 4
            D = 20 + 4 * nt
            c = "0" if t == 0 else f"v[{D}:{D+3}]"
            a(f"v_mfma_f32_16x16x32_bf16 v[{D}:{D+3}], v[{64+4*t}:{67+4*t}], v[{r}:{r+3}], {c}")
    a(f"""
    v_mov_b32 v40, -1
    v_mov_b32 v41, -1
    v_mov_b32 v42, -1
    v_mov_b32 v43, -1
    v_lshlrev_b32 v9, 4, v1
    s_mul_i32 s11, s2, 9216
    s_add_u32 s11, s11, {CLR0}
    """)
    for i in range(9):
        if i == 4: a("s_add_u32 s11, s11, 4096")
        if i == 8: a("s_add_u32 s11, s11, 4096")
        a(f"buffer_store_dwordx4 v[40:43], v9, {sWS}, s11 offen offset:{(i%4)*1024} sc1")
    sel_q4([36, 37, 38, 39], [[20 + 4 * q + v for v in range(4)] for q in range(4)])
    a(f"""
    v_lshlrev_b32 v9, 2, v1
    s_mul_i32 s11, s88, {4*15360}
    s_lshl_b32 s12, s89, 8
    s_add_u32 s11, s11, s12
    """)
    for v in range(4):
        a(f"buffer_store_dword v{36+v}, v9, {sWS}, s11 offen sc1")
        if v < 3: a("s_add_u32 s11, s11, 15360")
    a("s_waitcnt vmcnt(45)")
    for i in range(20):
        a(f"v_lshlrev_b32 v{112+2*i}, 16, v{84+i}\nv_and_b32 v{113+2*i}, 0xffff0000, v{84+i}")
    a("v_add_f32 v10, v112, v113")
    for i in range(2, 40):
        a(f"v_add_f32 v10, v10, v{112+i}")
    ror(10, 4); ror(10, 8); xrow_sum(10, 11)
    a(f"v_mul_f32 v10, {hex(0x3ACCCCCD)}, v10")
    for i in range(40):
        a(f"v_sub_f32 v{112+i}, v{112+i}, v10")
    a("v_mul_f32 v12, v112, v112")
    for i in range(1, 40):
        a(f"v_fmac_f32 v12, v{112+i}, v{112+i}")
    ror(12, 4); ror(12, 8); xrow_sum(12, 11)
    a(f"v_mul_f32 v12, {hex(0x3ACCCCCD)}, v12")
    rnd2(10, 12, 11)
    a(f"v_add_f32 v12, {hex(0x3727C5AC)}, v12")
    rnd1(12)
    a("v_sqrt_f32 v12, v12")
    rnd1(12)
    a("v_rcp_f32 v12, v12")
    for i in range(4):
        a(f"v_lshlrev_b32 v{44+2*i}, 16, v{104+i}\nv_and_b32 v{45+2*i}, 0xffff0000, v{104+i}")
    for i in range(8):
        a(f"v_sub_f32 v{44+i}, v{44+i}, v10")
    for i in range(0, 8, 2): rnd2(44 + i, 45 + i, 11)
    for i in range(8):
        a(f"v_mul_f32 v{44+i}, v{44+i}, v12")
    for i in range(0, 8, 2): rnd2(44 + i, 45 + i, 11)
    srd(64, 40, 256)
    a(f"""
    s_waitcnt vmcnt(0)
    s_and_b32 s11, s2, 3
    s_lshl_b32 s11, s11, 6
    v_mov_b32 v9, 0
    v_mov_b32 v8, 1
    s_mov_b64 exec, 1
    buffer_atomic_add v8, v9, {sC}, s11 offen sc1
    s_mov_b64 exec, -1
    """)
    TS(1)
    a(f"""
    v_lshrrev_b32 v6, 2, v4
    v_and_b32 v7, 3, v4
    v_lshl_add_u32 v6, v5, 3, v6
    v_lshlrev_b32 v8, 8, v6
    v_lshl_add_u32 v8, v7, 3, v8   ; (8g+r)*256 + 8c
    """)
    for t in range(4):
        for nt in range(8):
            r = 64 + (t * 8 + nt) * 4
            off = L_WQ + t * 8192 + nt * 32
            a(f"ds_read_b64_tr_b16 v[{r}:{r+1}], v8 offset:{off}")
            a(f"ds_read_b64_tr_b16 v[{r+2}:{r+3}], v8 offset:{off+1024}")
            if nt % 4 == 3: a("s_waitcnt lgkmcnt(0)")
    a("L_h_nounit1:")
    srd(64, 40, 256)
    a(f"""
    v_and_b32 v9, 3, v1
    v_lshlrev_b32 v9, 6, v9
    L_h_poll1:
    buffer_load_dword v8, v9, {sC}, 0 offen sc1
    s_waitcnt vmcnt(0)
    v_cmp_ne_u32 vcc, 60, v8
    s_cbranch_vccz L_h_poll1_ok
    s_sleep 2
    s_sub_u32 s84, s84, 1
    s_cmp_lg_u32 s84, 0
    s_cbranch_scc1 L_h_poll1
    L_h_poll1_ok:
    """)
    TS(4)
    a("s_cmp_ge_u32 s2, 240\ns_cbranch_scc1 L_h_nounit2")
    a(f"""
    v_and_b32 v6, 3, v4
    v_lshrrev_b32 v7, 2, v4
    v_mul_u32_u24 v8, 15360, v6
    v_lshl_add_u32 v8, v7, 7, v8
    v_lshl_add_u32 v8, v5, 5, v8     ; b*15360 + tq*128 + g*32
    s_lshl_b32 s11, s90, 9           ; kq*512
    """)
    for ks in range(4):
        r = 192 + ks * 16
        for j, off in enumerate((0, 16, 2560, 2576)):
            a(f"buffer_load_dwordx4 v[{r+4*j}:{r+4*j+3}], v8, {sWS}, s11 offen offset:{off} sc1")
        if ks < 3: a("s_add_u32 s11, s11, 61440")
    a("s_waitcnt vmcnt(0)")
    for i in range(16):
        a(f"v_add_f32 v{192+i}, v{192+i}, v{208+i}\nv_add_f32 v{224+i}, v{224+i}, v{240+i}")
    for i in range(16):
        a(f"v_add_f32 v{192+i}, v{192+i}, v{224+i}")
    for i in range(0, 16, 2): rnd2(192 + i, 193 + i, 11)
    for i in range(8):
        a(f"v_add_f32 v{200+i}, 1.0, v{200+i}")
    for i in range(0, 8, 2): rnd2(200 + i, 201 + i, 11)
    for i in range(8):
        a(f"v_mul_f32 v{44+i}, v{44+i}, v{200+i}")
    for i in range(0, 8, 2): rnd2(44 + i, 45 + i, 11)
    for i in range(8):
        a(f"v_add_f32 v{44+i}, v{44+i}, v{192+i}")
    for i in range(4):
        a(f"v_cvt_pk_bf16_f32 v{40+i}, v{44+2*i}, v{45+2*i}")
    a(f"""
    v_lshlrev_b32 v8, 8, v6
    v_lshl_add_u32 v9, v5, 4, v8       ; b*256 + g*16
    v_lshl_add_u32 v8, v7, 6, v9       ; + tq*64
    ds_write_b128 v8, v[40:43] offset:{L_HB - 131072}
    """) if False else None
    a(f"""
    v_lshlrev_b32 v8, 8, v6
    v_lshl_add_u32 v9, v5, 4, v8       ; b*256 + g*16
    v_add_u32 v9, {L_HB}, v9
    v_lshl_add_u32 v8, v7, 6, v9       ; + tq*64
    ds_write_b128 v8, v[40:43]
    s_waitcnt lgkmcnt(0)
    ds_read_b128 v[192:195], v9
    ds_read_b128 v[196:199], v9 offset:64
    ds_read_b128 v[200:203], v9 offset:128
    ds_read_b128 v[204:207], v9 offset:192
    s_waitcnt lgkmcnt(0)
    """)
    for t in range(4):
        for nt in range(8):
            r = 64 + (t * 8 + nt) * 4
            D = 20 + 4 * nt
            c = "0" if t == 0 else f"v[{D}:{D+3}]"
            a(f"v_mfma_f32_16x16x32_bf16 v[{D}:{D+3}], v[{192+4*t}:{195+4*t}], v[{r}:{r+3}], {c}")
    sel_q4([208, 209, 210, 211], [[20 + 4 * q + v for v in range(4)] for q in range(4)])
    sel_q4([212, 213, 214, 215], [[36 + 4 * q + v for v in range(4)] for q in range(4)])
    a(f"""
    v_lshlrev_b32 v9, 2, v1
    s_mul_i32 s11, s90, {4*24576}
    s_lshl_b32 s12, s91, 9
    s_add_u32 s11, s11, s12
    s_add_u32 s11, s11, {QP}
    """)
    for v in range(4):
        a(f"buffer_store_dword v{208+v}, v9, {sWS}, s11 offen sc1")
        a(f"buffer_store_dword v{212+v}, v9, {sWS}, s11 offen offset:256 sc1")
        if v < 3: a("s_add_u32 s11, s11, 24576")
    a("L_h_nounit2:")
    TS(5)
    a(f"s_cmp_lt_u32 s2, {RED0}\ns_cbranch_scc1 L_h_nored")
    srd(64, 16, 5120)
    a(f"""
    s_sub_u32 s9, s2, {RED0}           ; r
    v_mul_u32_u24 v8, 15360, v5
    v_lshl_add_u32 v8, v4, 2, v8       ; b*15360 + n*4
    s_lshl_b32 s11, s9, 6
    s_add_u32 s11, s11, {2*2560}
    """)
    for ks in range(4):
        a(f"buffer_load_dword v{64+ks*4+0}, v8, {sWS}, s11 offen sc1")
        a(f"buffer_load_dword v{64+ks*4+1}, v8, {sWS}, s11 offen offset:2560 sc1")
        a("s_add_u32 s12, s11, 5120")
        a(f"buffer_load_dword v{64+ks*4+2}, v8, {sWS}, s12 offen sc1")
        a(f"buffer_load_dword v{64+ks*4+3}, v8, {sWS}, s12 offen offset:2560 sc1")
        if ks < 3: a("s_add_u32 s11, s11, 61440")
    a(f"""
    v_mul_u32_u24 v9, 1280, v5
    v_lshl_add_u32 v9, v4, 1, v9       ; b*1280 + n*2
    s_lshl_b32 s11, s9, 5
    buffer_load_ushort v83, v9, {sC}, s11 offen
    s_waitcnt vmcnt(0)
    """)
    for j in range(4):
        a(f"v_add_f32 v{64+j}, v{64+j}, v{68+j}\nv_add_f32 v{72+j}, v{72+j}, v{76+j}")
    for j in range(4):
        a(f"v_add_f32 v{64+j}, v{64+j}, v{72+j}")
    rnd2(64, 65, 11); rnd2(66, 67, 11)
    a("v_add_f32 v66, 1.0, v66")
    rnd1(66)
    a(f"""
    v_mov_b32 v80, v64                   ; ga
    v_mov_b32 v81, v67                   ; gb
    v_mov_b32 v82, v66                   ; cb1
    v_lshlrev_b32 v83, 16, v83           ; x
    v_lshlrev_b32 v8, 4, v1
    v_add_u32 v8, {L_RS}, v8
    ds_write_b128 v8, v[80:83]
    v_mov_b32_dpp v68, v66 quad_perm:[1,0,3,2] row_mask:0xf bank_mask:0xf
    v_mov_b32_dpp v69, v65 quad_perm:[1,0,3,2] row_mask:0xf bank_mask:0xf
    v_lshrrev_b32 v66, 16, v66
    v_lshrrev_b32 v65, 16, v65
    v_or_b32 v66, v66, v68
    v_or_b32 v65, v65, v69
    v_min_u32 v66, 0xfffffffe, v66
    v_min_u32 v65, 0xfffffffe, v65
    s_add_u32 s11, s11, {XA + 4*1280}
    s_add_u32 s12, s11, {4*1280}
    s_mov_b32 exec_lo, 0x55555555
    s_mov_b32 exec_hi, 0x55555555
    buffer_store_dword v66, v9, {sWS}, s11 offen sc1
    buffer_store_dword v65, v9, {sWS}, s12 offen sc1
    s_mov_b64 exec, -1
    L_h_nored:
    """)
    a(f"""
    v_min_u32 v8, 47, v1
    v_lshlrev_b32 v8, 4, v8
    s_mul_i32 s11, s5, 24576
    s_mul_i32 s12, s4, 768
    s_add_u32 s11, s11, s12
    s_add_u32 s11, s11, {QP}
    L_h_poll2:
    s_mov_b32 s12, s11
    """)
    for kq in range(5):
        a(f"buffer_load_dwordx4 v[{64+4*kq}:{67+4*kq}], v8, {sWS}, s12 offen sc1")
        if kq < 4: a("s_add_u32 s12, s12, 98304")
    a("s_waitcnt vmcnt(0)")
    chk(range(64, 84), 9, "L_h_poll2")
    for v in range(4):
        a(f"v_add_f32 v{64+v}, v{64+v}, v{68+v}\nv_add_f32 v{72+v}, v{72+v}, v{76+v}")
    for v in range(4):
        a(f"v_add_f32 v{64+v}, v{64+v}, v{72+v}")
    for v in range(4):
        a(f"v_add_f32 v{64+v}, v{64+v}, v{80+v}")
    a(f"""
    v_cvt_pk_bf16_f32 v10, v64, v65
    v_cvt_pk_bf16_f32 v11, v66, v67
    v_lshrrev_b32 v8, 1, v8
    v_add_u32 v8, {L_Q}, v8
    ds_write_b64 v8, v[10:11]
    s_waitcnt lgkmcnt(0)
    """)
    TS(6)
    a("s_barrier")
    attention(None, 0, True)

    a("L_tail:")
    a(f"""
    v_lshrrev_b32 v6, 3, v4            ; u
    v_mul_u32_u24 v6, 768, v6
    v_and_b32 v7, 7, v4
    v_lshl_add_u32 v6, v7, 5, v6       ; + (n&7)*32
    v_and_b32 v7, 1, v5
    v_lshl_add_u32 v6, v7, 4, v6       ; + (q4&1)*16
    s_mul_i32 s8, s3, 1536
    s_add_u32 s8, s8, {L_RED}
    v_add_u32 v6, s8, v6
    s_nop 4
    s_mov_b64 exec, {mRED}
    ds_write_b128 v6, v[20:23]
    ds_write_b128 v6, v[24:27] offset:256
    ds_write_b128 v6, v[28:31] offset:512
    s_mov_b64 exec, -1
    s_waitcnt lgkmcnt(0)
    """)
    TS(7)
    a("s_barrier")
    a("s_setprio 0")
    a("s_cmp_ge_u32 s3, 3\ns_cbranch_scc1 L_t_not_sum")
    a(f"""
    v_mov_b32 v6, {L_MLW}
    ds_read_b128 v[20:23], v6
    ds_read_b128 v[24:27], v6 offset:16
    ds_read_b128 v[28:31], v6 offset:32
    ds_read_b128 v[32:35], v6 offset:48
    v_lshlrev_b32 v7, 2, v0            ; d*4 (tid = 64w + l)
    v_add_u32 v6, {L_RED}, v7
    """)
    for i in range(16):
        a(f"ds_read_b32 v{64+i}, v6 offset:{i*768}")
    a(f"""
    s_waitcnt lgkmcnt(15)
    v_max3_f32 v8, v20, v22, v24
    v_max3_f32 v8, v8, v26, v28
    v_max3_f32 v8, v8, v30, v32
    v_max_f32 v8, v8, v34
    """)
    for w in range(8):
        a(f"v_sub_f32 v{20+2*w}, v{20+2*w}, v8")
    for w in range(8):
        a(f"v_mul_f32 v{20+2*w}, {hex(LOG2E)}, v{20+2*w}")
    for w in range(8):
        a(f"v_exp_f32 v{20+2*w}, v{20+2*w}")
    a("s_waitcnt lgkmcnt(0)")
    for w in range(8):
        a(f"v_add_f32 v{64+2*w}, v{64+2*w}, v{65+2*w}")
    a("v_mul_f32 v10, v20, v64\nv_mul_f32 v9, v20, v21")
    for w in range(1, 8):
        a(f"v_fmac_f32 v10, v{20+2*w}, v{64+2*w}\nv_fmac_f32 v9, v{20+2*w}, v{21+2*w}")
    a(f"""
    s_lshl_b32 s8, s5, 1
    s_add_u32 s8, s8, s6
    s_mul_i32 s8, s8, 24576
    s_mul_i32 s9, s4, 768
    s_add_u32 s8, s8, s9
    s_add_u32 s8, s8, {OP}
    buffer_store_dword v10, v7, {sWS}, s8 offen sc1
    s_lshl_b32 s8, s5, 5
    s_add_u32 s8, s8, s4
    s_lshl_b32 s8, s8, 4
    s_lshl_b32 s9, s6, 3
    s_add_u32 s8, s8, s9
    s_add_u32 s8, s8, {ML}
    s_mov_b64 exec, 1
    buffer_store_dwordx2 v[8:9], v1, {sWS}, s8 offen sc1
    s_mov_b64 exec, -1
    s_waitcnt vmcnt(2)
    """)
    TS(8)
    a("s_barrier")
    a(f"s_cmp_lt_u32 s2, {NFFN}\ns_cbranch_scc1 L_ffn\ns_branch L_end")
    a("L_t_not_sum:")
    a(f"s_cmp_ge_u32 s2, {NFFN}\ns_cbranch_scc1 L_t_noffndma")
    srd(56, 28, 1966080)
    srd(60, 30, 1966080)
    srd(64, 32, 1966080)
    a(f"""
    s_and_b32 s8, s2, 7
    s_lshr_b32 s9, s2, 3
    s_mul_i32 s8, s8, 3
    s_lshr_b32 s10, s9, 2
    s_add_u32 s8, s8, s10
    s_lshl_b32 s8, s8, 2
    s_and_b32 s9, s9, 3
    s_add_u32 s8, s8, s9            ; fs
    v_lshrrev_b32 v6, 1, v1
    v_mul_u32_u24 v6, 3072, v6
    v_and_b32 v7, 1, v1
    v_lshl_add_u32 v6, v7, 4, v6
    v_lshlrev_b32 v7, 4, v1
    s_sub_u32 s9, s3, 3
    s_mul_i32 s10, s9, {4*32*3072}
    s_lshl_b32 s11, s8, 5
    s_add_u32 s10, s10, s11
    s_mul_i32 s11, s8, 20480
    s_lshl_b32 s12, s9, 12
    s_add_u32 s11, s11, s12
    s_add_u32 s13, s12, {L_WG}
    """)
    for i in range(4):
        a(f"s_mov_b32 m0, s13")
        a(f"buffer_load_dwordx4 v6, {sA}, s10 offen nt lds")
        a(f"s_add_u32 m0, s13, {L_WU - L_WG}")
        a(f"buffer_load_dwordx4 v6, {sB}, s10 offen nt lds")
        a(f"s_add_u32 m0, s13, {L_WD - L_WG}")
        a(f"buffer_load_dwordx4 v7, {sC}, s11 offen nt lds")
        if i < 3:
            a(f"s_add_u32 s10, s10, {32*3072}\ns_add_u32 s11, s11, 1024\ns_add_u32 s13, s13, 1024")
    a("s_waitcnt vmcnt(12)\ns_branch L_t_b2")
    a("L_t_noffndma:\ns_waitcnt vmcnt(0)")
    a("L_t_b2:")
    TS(8)
    a("s_barrier")
    a("s_cmp_eq_u32 s3, 3\ns_cbranch_scc1 L_w3")
    a("s_cmp_ge_u32 s2, 240\ns_cbranch_scc1 L_end")
    a(f"""
    s_sub_u32 s8, s3, 4               ; nt
    v_lshrrev_b32 v6, 2, v4
    v_and_b32 v7, 3, v4
    v_lshl_add_u32 v6, v5, 3, v6
    v_lshlrev_b32 v6, 7, v6
    v_lshl_add_u32 v6, v7, 3, v6
    s_lshl_b32 s9, s8, 5
    s_add_u32 s9, s9, {L_WO}
    v_add_u32 v6, s9, v6
    """)
    for t in range(8):
        a(f"ds_read_b64_tr_b16 v[{64+4*t}:{65+4*t}], v6 offset:{t*4096}")
        a(f"ds_read_b64_tr_b16 v[{66+4*t}:{67+4*t}], v6 offset:{t*4096+512}")
        if t == 3: a("s_waitcnt lgkmcnt(0)")
    a(f"""
    s_mul_i32 s9, s2, 6554
    s_lshr_b32 s9, s9, 16          ; ob
    s_mul_i32 s10, s9, 10
    s_sub_u32 s10, s2, s10         ; oc
    v_and_b32 v6, 7, v4            ; s + 2b
    v_lshrrev_b32 v7, 3, v4        ; th
    v_mul_u32_u24 v8, 24576, v6
    v_lshl_add_u32 v8, v7, 9, v8
    v_lshl_add_u32 v8, v5, 5, v8   ; (2b+s)*24576 + th*512 + g*32
    s_lshl_b32 s11, s9, 10
    s_add_u32 s11, s11, {OP}
    ; heads
    s_lshl_b32 s12, s9, 2
    v_lshl_add_u32 v9, v7, 1, s12
    v_add_u32 v10, 1, v9
    v_mul_u32_u24 v9, 171, v9
    v_mul_u32_u24 v10, 171, v10
    v_lshrrev_b32 v9, 9, v9        ; hA
    v_lshrrev_b32 v10, 9, v10      ; hB
    v_bfe_u32 v11, v4, 1, 2        ; b
    v_lshlrev_b32 v11, 9, v11
    v_lshl_add_u32 v9, v9, 4, v11
    v_lshl_add_u32 v10, v10, 4, v11
    s_mov_b32 s12, {ML}
    L_wo_poll:
    """)
    for i in range(4):
        a(f"buffer_load_dwordx4 v[{96+8*i}:{99+8*i}], v8, {sWS}, s11 offen offset:{i*128} sc1")
        a(f"buffer_load_dwordx4 v[{100+8*i}:{103+8*i}], v8, {sWS}, s11 offen offset:{i*128+16} sc1")
    a(f"buffer_load_dwordx4 v[128:131], v9, {sWS}, s12 offen sc1")
    a(f"buffer_load_dwordx4 v[132:135], v10, {sWS}, s12 offen sc1")
    a("s_waitcnt vmcnt(0)")
    chk(range(96, 136), 11, "L_wo_poll")
    TS(9)
    for h in range(2):
        r = 128 + 4 * h
        a(f"""
        v_max_f32 v12, v{r}, v{r+2}
        v_sub_f32 v{r}, v{r}, v12
        v_sub_f32 v{r+2}, v{r+2}, v12
        v_mul_f32 v{r}, {hex(LOG2E)}, v{r}
        v_mul_f32 v{r+2}, {hex(LOG2E)}, v{r+2}
        v_exp_f32 v{r}, v{r}
        v_exp_f32 v{r+2}, v{r+2}
        v_mul_f32 v{r+1}, v{r+1}, v{r}
        v_fmac_f32 v{r+1}, v{r+3}, v{r+2}
        v_rcp_f32 v{r+1}, v{r+1}
        v_cndmask_b32 v{r}, v{r}, v{r+2}, {mODD}
        v_mul_f32 v{r}, v{r}, v{r+1}
        """)
    for i in range(32):
        f = 128 if i < 16 else 132
        a(f"v_mul_f32 v{96+i}, v{96+i}, v{f}")
    for i in range(32):
        a(f"v_add_f32_dpp v{96+i}, v{96+i}, v{96+i} quad_perm:[1,0,3,2] row_mask:0xf bank_mask:0xf")
    for i in range(16):
        a(f"v_cvt_pk_bf16_f32 v{136+i}, v{96+2*i}, v{97+2*i}")
    a("s_waitcnt lgkmcnt(0)")
    for i in range(4):
        for th in range(2):
            D = 20 + 4 * th
            c = "0" if i == 0 else f"v[{D}:{D+3}]"
            t = 4 * th + i
            a(f"v_mfma_f32_16x16x32_bf16 v[{D}:{D+3}], v[{136+4*i}:{139+4*i}], v[{64+4*t}:{67+4*t}], {c}")
    a(f"""
    s_mov_b32 s14, 0
    s_mov_b32 s15, -1
    v_and_b32 v7, 1, v5
    v_lshlrev_b32 v6, 4, v4
    v_lshl_add_u32 v6, v7, 3, v6      ; n*16 + (q4&1)*8
    s_lshl_b32 s10, s10, 2
    s_add_u32 s10, s10, s8
    s_mul_i32 s10, s10, 24
    s_add_u32 s10, s10, s9
    s_lshl_b32 s10, s10, 8
    s_add_u32 s10, s10, {AM}
    v_cndmask_b32 v12, v20, v24, s[14:15]
    v_cndmask_b32 v13, v22, v26, s[14:15]
    v_mov_b32 v14, v12
    v_mov_b32 v15, v13
    v_permlane32_swap_b32 v12, v14
    v_permlane32_swap_b32 v13, v15
    v_add_f32 v12, v12, v14
    v_add_f32 v13, v13, v15
    s_mov_b32 exec_hi, 0
    buffer_store_dwordx2 v[12:13], v6, {sWS}, s10 offen sc1
    s_mov_b64 exec, -1
    """)
    TS(10)
    a(f"s_cmp_lt_u32 s2, {NFFN}\ns_cbranch_scc1 L_ffn\ns_branch L_end")

    a("L_w3:")
    a(f"s_cmp_lt_u32 s2, {NFFN}\ns_cbranch_scc1 L_ffn")
    a(f"s_cmp_lt_u32 s2, {RED0}\ns_cbranch_scc1 L_end")
    a(f"""
    s_sub_u32 s9, s2, {RED0}          ; r
    v_lshlrev_b32 v8, 4, v1
    v_add_u32 v9, {L_RS}, v8
    ds_read_b128 v[40:43], v9
    s_mul_i32 s11, s9, {24*256}
    s_add_u32 s11, s11, {AM}
    s_add_u32 s12, s11, 4096
    L_r_poll:
    """)
    for i in range(6):
        so = "s11" if i < 4 else "s12"
        a(f"buffer_load_dwordx4 v[{64+4*i}:{67+4*i}], v8, {sWS}, {so} offen offset:{(i%4)*1024} sc1")
    a("s_waitcnt vmcnt(0)")
    chk(range(64, 88), 11, "L_r_poll")
    TS(9)
    for v in range(4):
        a(f"v_add_f32 v{64+v}, v{64+v}, v{68+v}\nv_add_f32 v{72+v}, v{72+v}, v{76+v}\nv_add_f32 v{80+v}, v{80+v}, v{84+v}")
    for v in range(4):
        a(f"v_add_f32 v{64+v}, v{64+v}, v{72+v}")
    for v in range(4):
        a(f"v_add_f32 v{64+v}, v{64+v}, v{80+v}")
    def xsum4(base, tb):
        for v in range(4): a(f"v_mov_b32 v{tb+v}, v{base+v}")
        for v in range(4): a(f"v_permlane16_swap_b32 v{base+v}, v{tb+v}")
        for v in range(4): a(f"v_add_f32 v{base+v}, v{base+v}, v{tb+v}")
        for v in range(4): a(f"v_mov_b32 v{tb+v}, v{base+v}")
        for v in range(4): a(f"v_permlane32_swap_b32 v{base+v}, v{tb+v}")
        for v in range(4): a(f"v_add_f32 v{base+v}, v{base+v}, v{tb+v}")
    xsum4(64, 68)
    sel_q4([12], [[64], [65], [66], [67]])
    rnd1(12)
    a("s_waitcnt lgkmcnt(0)\nv_mul_f32 v12, v40, v12")
    rnd1(12)
    a("v_add_f32 v12, v43, v12")
    rnd1(12)
    a(f"""
    v_mul_f32 v13, v12, v42
    v_cvt_pk_bf16_f32 v13, v13, v13
    v_and_b32 v13, 0xffff0000, v13
    v_mov_b32 v15, v12
    v_mov_b32_dpp v14, v13 quad_perm:[1,0,3,2] row_mask:0xf bank_mask:0xf
    v_lshrrev_b32 v13, 16, v13
    v_or_b32 v13, v13, v14
    v_min_u32 v13, 0xfffffffe, v13
    v_mul_u32_u24 v9, 1280, v5
    v_lshl_add_u32 v9, v4, 1, v9
    s_lshl_b32 s11, s9, 5
    s_add_u32 s12, s11, {XA}
    s_mov_b32 exec_lo, 0x55555555
    s_mov_b32 exec_hi, 0x55555555
    buffer_store_dword v13, v9, {sWS}, s12 offen sc1
    s_mov_b64 exec, -1
    """)
    for n in (1, 2, 4, 8): ror(15, n)
    a(f"v_mul_f32 v16, 0x3d800000, v15\nv_sub_f32 v17, v12, v16\nv_mul_f32 v17, v17, v17")
    for n in (1, 2, 4, 8): ror(17, n)
    a(f"""
    v_lshlrev_b32 v10, 3, v5
    s_add_u32 s12, s11, {ST}
    s_mov_b32 exec_lo, 0x00010001
    s_mov_b32 exec_hi, 0x00010001
    buffer_store_dwordx2 v[16:17], v10, {sWS}, s12 offen sc1
    s_mov_b64 exec, -1
    """)
    TS(10)
    a(f"""
    s_mul_i32 s11, s9, {NFFN*256}
    s_add_u32 s11, s11, {EM}
    L_e_poll:
    s_mov_b32 s12, s11
    """)
    NE = NFFN // 4
    for i in range(NE):
        a(f"buffer_load_dwordx4 v[{64+4*i}:{67+4*i}], v8, {sWS}, s12 offen offset:{(i%4)*1024} sc1")
        if i % 4 == 3 and i < NE - 1: a("s_add_u32 s12, s12, 4096")
    a("s_waitcnt vmcnt(0)")
    chk(range(64, 64 + 4 * NE), 11, "L_e_poll")
    TS(11)
    n = NE
    while n > 1:
        h = n // 2
        for i in range(h):
            for v in range(4):
                a(f"v_add_f32 v{64+4*i+v}, v{64+4*i+v}, v{64+4*(n-1-i)+v}")
        n = n - h
    xsum4(64, 68)
    sel_q4([13], [[64], [65], [66], [67]])
    rnd1(13)
    a("v_mul_f32 v13, v41, v13")
    rnd1(13)
    srd(56, 38, 5120)
    a(f"""
    v_add_f32 v13, v12, v13
    v_cvt_pk_bf16_f32 v13, v13, v13
    s_lshl_b32 s11, s9, 5
    buffer_store_short v13, v9, {sA}, s11 offen
    """)
    TS(12)
    a("s_branch L_end")

    a("L_ffn:")
    a("s_waitcnt vmcnt(0)\ns_barrier")
    a(f"""
    s_and_b32 s8, s2, 7
    s_lshr_b32 s9, s2, 3
    s_mul_i32 s8, s8, 3
    s_lshr_b32 s10, s9, 2
    s_add_u32 s8, s8, s10
    s_lshl_b32 s8, s8, 2
    s_and_b32 s9, s9, 3
    s_add_u32 s8, s8, s9            ; fs
    s_and_b32 s9, s3, 1             ; nt
    s_lshr_b32 s10, s3, 1           ; kq4
    v_lshrrev_b32 v6, 2, v4         ; r
    v_and_b32 v7, 3, v4             ; c
    v_lshl_add_u32 v8, v5, 3, v6    ; 8g + r
    v_lshlrev_b32 v8, 5, v8
    v_lshl_add_u32 v8, v7, 3, v8
    s_mul_i32 s11, s9, {L_WU - L_WG}
    s_mul_i32 s12, s10, 5120
    s_add_u32 s11, s11, s12
    s_add_u32 s11, s11, {L_WG}
    v_add_u32 v8, s11, v8
    """)
    for i in range(5):
        a(f"ds_read_b64_tr_b16 v[{64+4*i}:{65+4*i}], v8 offset:{i*1024}")
        a(f"ds_read_b64_tr_b16 v[{66+4*i}:{67+4*i}], v8 offset:{i*1024+128}")
    a(f"""
    v_lshl_add_u32 v8, v5, 2, v6    ; 4g + r
    v_mul_u32_u24 v8, 1280, v8
    v_lshl_add_u32 v8, v7, 3, v8
    s_mul_i32 s11, s3, 160
    s_add_u32 s11, s11, {L_WD}
    v_add_u32 v8, s11, v8
    """)
    for i in range(5):
        a(f"ds_read_b64_tr_b16 v[{84+2*i}:{85+2*i}], v8 offset:{i*32}")
    a(f"""
    v_min_u32 v8, 11, v4
    v_mul_u32_u24 v8, 1280, v8
    v_lshl_add_u32 v8, v5, 4, v8
    s_mul_i32 s11, s10, 320
    s_add_u32 s11, s11, {XA}
    v_lshlrev_b32 v9, 3, v1
    v_and_b32 v10, 31, v1
    v_lshlrev_b32 v10, 3, v10
    s_mov_b32 s12, {ST}
    s_lshl_b32 s13, s9, 12
    s_lshl_b32 s14, s10, 2
    s_add_u32 s13, s13, s14
    s_add_u32 s13, s13, {L_FR}
    v_lshlrev_b32 v11, 10, v5
    v_lshl_add_u32 v11, v4, 4, v11
    v_add_u32 v11, s13, v11
    v_and_b32 v12, 3, v1
    v_lshrrev_b32 v13, 2, v1
    v_lshlrev_b32 v12, 8, v12
    v_lshl_add_u32 v12, v13, 4, v12
    v_add_u32 v12, {L_FR}, v12
    L_f_poll:
    """)
    for i in range(5):
        a(f"buffer_load_dwordx4 v[{96+4*i}:{99+4*i}], v8, {sWS}, s11 offen offset:{i*64} sc1")
    a(f"buffer_load_dwordx2 v[116:117], v9, {sWS}, s12 offen sc1")
    a(f"buffer_load_dwordx2 v[118:119], v9, {sWS}, s12 offen offset:512 sc1")
    a(f"buffer_load_dwordx2 v[120:121], v10, {sWS}, s12 offen offset:1024 sc1")
    a("s_waitcnt vmcnt(0)")
    chk(range(96, 122), 14, "L_f_poll")
    TS(11)
    a("s_waitcnt lgkmcnt(0)")
    for i in range(5):
        c = "0" if i == 0 else "v[20:23]"
        a(f"v_mfma_f32_16x16x32_bf16 v[20:23], v[{96+4*i}:{99+4*i}], v[{64+4*i}:{67+4*i}], {c}")
    a(f"""
    s_mov_b32 s14, 0
    s_mov_b32 s15, -1
    v_add_f32 v14, v116, v118
    v_cndmask_b32 v15, v120, 0, s[14:15]
    v_add_f32 v14, v14, v15
    """)
    ror(14, 4); ror(14, 8); xrow_sum(14, 15)
    a(f"""
    v_mul_f32 v14, 0x3ccccccd, v14      ; /40 -> mean
    ds_write_b32 v11, v20
    ds_write_b32 v11, v21 offset:256
    ds_write_b32 v11, v22 offset:512
    ds_write_b32 v11, v23 offset:768
    v_sub_f32 v116, v116, v14
    v_sub_f32 v118, v118, v14
    v_sub_f32 v120, v120, v14
    v_mul_f32 v116, v116, v116
    v_mul_f32 v118, v118, v118
    v_mul_f32 v120, v120, v120
    v_fmac_f32 v117, 0x41800000, v116
    v_fmac_f32 v119, 0x41800000, v118
    v_fmac_f32 v121, 0x41800000, v120
    v_add_f32 v16, v117, v119
    v_cndmask_b32 v15, v121, 0, s[14:15]
    v_add_f32 v16, v16, v15
    s_waitcnt lgkmcnt(0)
    s_barrier
    """)
    for j in range(6):
        off = ((j // 3) * 4 + (j % 3)) * 1024
        a(f"ds_read_b128 v[{24+4*j}:{27+4*j}], v12 offset:{off}")
    ror(16, 4); ror(16, 8); xrow_sum(16, 15)
    a(f"v_mul_f32 v16, {hex(0x3ACCCCCD)}, v16")
    rnd2(14, 16, 15)
    a(f"v_add_f32 v16, {hex(0x3727C5AC)}, v16")
    rnd1(16)
    a("v_sqrt_f32 v16, v16")
    rnd1(16)
    a("v_rcp_f32 v16, v16")
    a("s_waitcnt lgkmcnt(0)")
    for j in range(6):
        r = 24 + 4 * j
        a(f"v_add_f32 v{r}, v{r}, v{r+1}\nv_add_f32 v{r+2}, v{r+2}, v{r+3}")
    for j in range(6):
        r = 24 + 4 * j
        a(f"v_add_f32 v{r}, v{r}, v{r+2}")
    a(f"""
    v_fma_f32 v24, -v14, v28, v24
    v_fma_f32 v36, -v14, v40, v36
    v_fma_f32 v24, v24, v16, v32
    v_fma_f32 v36, v36, v16, v44
    """)
    rnd2(24, 36, 15)
    a(f"""
    v_cmp_lt_f32 vcc, 0, v24
    v_cndmask_b32 v25, 0, 1.0, vcc
    v_mul_f32 v24, v24, v25
    v_mul_f32 v24, v24, v36
    v_mov_b32_dpp v25, v24 row_ror:12 row_mask:0xf bank_mask:0xf
    v_mov_b32_dpp v26, v24 row_ror:8 row_mask:0xf bank_mask:0xf
    v_mov_b32_dpp v27, v24 row_ror:4 row_mask:0xf bank_mask:0xf
    v_cvt_pk_bf16_f32 v28, v24, v25
    v_cvt_pk_bf16_f32 v29, v26, v27
    v_lshlrev_b32 v6, 4, v4
    s_mul_i32 s11, s3, {5*NFFN*256}
    s_lshl_b32 s12, s8, 8
    s_add_u32 s11, s11, s12
    s_add_u32 s11, s11, {EM}
    """)
    for i in range(5):
        a(f"v_mfma_f32_16x16x16_bf16 v[{32+4*i}:{35+4*i}], v[28:29], v[{84+2*i}:{85+2*i}], 0")
    a("s_mov_b64 exec, 0xffff")
    for i in range(5):
        a(f"buffer_store_dwordx4 v[{32+4*i}:{35+4*i}], v6, {sWS}, s11 offen sc1")
        if i < 4: a(f"s_add_u32 s11, s11, {NFFN*256}")
    a("s_mov_b64 exec, -1")
    TS(12)

    a("L_end:")
    if ts:
        TS(15)
        a(f"""
        s_lshl_b32 s8, s2, 3
        s_add_u32 s8, s8, s3
        s_lshl_b32 s8, s8, 6
        s_add_u32 s8, s8, {TSOFF}
        v_lshlrev_b32 v6, 2, v1
        s_mov_b64 exec, 0xffff
        buffer_store_dword v63, v6, {sTS}, s8 offen
        """)
    a("L_exit:\ns_endpgm")
    a.footer(256, 96)
    nn = a.write(out)
    return nn

if __name__ == "__main__":
    print(gen("k1.s"), "nops")
    print(gen("k1_ts.s", ts=True), "nops")
```

```python
import sys, copy
from asmlib import *

EPOCH = 0x0
FLAG1 = 0x1000
MODP = 0x10000
QP   = 0x50000
OPX  = 0x140000
AM   = 0x188000
CM   = 0x1C4000
CST  = 0x2B4000
CMS  = 0x2E0000
EM   = 0x4C0000
WSEND = 0x5B0000
TSOFF = 0x2000000
L_WM = 0
L_WQ = 20480
L_WO = 53248
L_W1 = 86016
L_WD = 102400
L_RED = 122880
L_WR = 135168
L_AR = 143360
L_CR = 147456
L_MISC = 155648
L_Q = L_MISC
L_MLW = L_MISC + 512
L_SS = L_MISC + 640
L_CNT = L_MISC + 704
L_HB = L_MISC + 1024
L_CC = L_MISC + 2048
L_SA = L_MISC + 4096
L_X1 = L_MISC + 4608
LDS_TOTAL = 163840
LOG2E = 0x3FB8AA3B
SCALE = 0x3D93CD3A
S2_0 = 144
NRED = 80
SPIN = 100000
TAG = "s85"

def gen(out, NV1=2, D=5, D1=3, N1=24, ts=False, comments=(), nocms=False, hpre=(0,), pre=(0,0,0,8), intv=(0,0,0,0)):
    a = Asm()
    a.header(256, 512, LDS_TOTAL, comments)
    sK, sV, sWS, sA, sB, sC, sTS = "s[44:47]", "s[48:51]", "s[52:55]", "s[56:59]", "s[60:63]", "s[64:67]", "s[68:71]"
    mODD, mNHI, mQ1, mQ2, mQ3, mRED, mHI = "s[72:73]", "s[74:75]", "s[76:77]", "s[78:79]", "s[80:81]", "s[82:83]", "s[92:93]"
    P0, P1, P2, U0, U1 = "s94", "s95", "s96", "s97", "s98"
    def srd(base, ptr, size):
        a(f"s_mov_b32 s{base}, s{ptr}\ns_mov_b32 s{base+1}, s{ptr+1}\ns_mov_b32 s{base+2}, {size}\ns_mov_b32 s{base+3}, 0x20000")
    def TS(k):
        if ts:
            a(f"s_memrealtime s[86:87]\ns_waitcnt lgkmcnt(0)\nv_writelane_b32 v63, s86, {k}")
    def xrow_sum(r, t, op="v_add_f32"):
        a(f"v_mov_b32 v{t}, v{r}\nv_permlane16_swap_b32 v{r}, v{t}\n{op} v{r}, v{r}, v{t}")
        a(f"v_mov_b32 v{t}, v{r}\nv_permlane32_swap_b32 v{r}, v{t}\n{op} v{r}, v{r}, v{t}")
    def ror(r, n, op="v_add_f32"):
        a(f"{op}_dpp v{r}, v{r}, v{r} row_ror:{n} row_mask:0xf bank_mask:0xf")
    def rnd2(x, y, p):
        a(f"v_cvt_pk_bf16_f32 v{p}, v{x}, v{y}\nv_lshlrev_b32 v{x}, 16, v{p}\nv_and_b32 v{y}, 0xffff0000, v{p}")
    def rnd1(x):
        a(f"v_cvt_pk_bf16_f32 v{x}, v{x}, v{x}\nv_and_b32 v{x}, 0xffff0000, v{x}")
    def chk(tagregs, t, retry, sleep=0):
        regs = list(tagregs)
        a(f"v_xor_b32 v{t}, {TAG}, v{regs[0]}")
        for r in regs[1:]:
            a(f"v_xor_b32 v{t+1}, {TAG}, v{r}\nv_or_b32 v{t}, v{t}, v{t+1}")
        lab = a.label("L_ok")
        a(f"""
        v_cmp_ne_u32 vcc, 0, v{t}
        s_cbranch_vccz {lab}
        {'s_sleep %d' % sleep if sleep else ''}
        s_sub_u32 s84, s84, 1
        s_cmp_lg_u32 s84, 0
        s_cbranch_scc1 {retry}
        {lab}:
        """)
    def pack4(d, v0, v1, v2, v3):
        a(f"v_perm_b32 v{d}, v{v0}, v{v3}, {P0}")
        a(f"v_perm_b32 v{d+1}, v{v1}, v{v3}, {P1}")
        a(f"v_perm_b32 v{d+2}, v{v2}, v{v3}, {P2}")
        a(f"v_mov_b32 v{d+3}, {TAG}")
    def unpack4(d):
        a(f"v_perm_b32 v{d+3}, v{d}, v{d+1}, {U0}")
        a(f"v_perm_b32 v{d+3}, v{d+3}, v{d+2}, {U1}")
    def quad_gather(d, src):
        a(f"v_mov_b32_dpp v{d+1}, v{src} quad_perm:[1,1,1,1] row_mask:0xf bank_mask:0xf")
        a(f"v_mov_b32_dpp v{d+2}, v{src} quad_perm:[2,2,2,2] row_mask:0xf bank_mask:0xf")
        a(f"v_mov_b32_dpp v{d+3}, v{src} quad_perm:[3,3,3,3] row_mask:0xf bank_mask:0xf")
        pack4(d, src, d + 1, d + 2, d + 3)
    def sel_q4(dsts, sets):
        for v in range(len(dsts)):
            a(f"v_cndmask_b32 v{dsts[v]}, v{sets[0][v]}, v{sets[1][v]}, {mQ1}")
            a(f"v_cndmask_b32 v{dsts[v]}, v{dsts[v]}, v{sets[2][v]}, {mQ2}")
            a(f"v_cndmask_b32 v{dsts[v]}, v{dsts[v]}, v{sets[3][v]}, {mQ3}")
    def xsum4(base, tb):
        for v in range(4): a(f"v_mov_b32 v{tb+v}, v{base+v}")
        for v in range(4): a(f"v_permlane16_swap_b32 v{base+v}, v{tb+v}")
        for v in range(4): a(f"v_add_f32 v{base+v}, v{base+v}, v{tb+v}")
        for v in range(4): a(f"v_mov_b32 v{tb+v}, v{base+v}")
        for v in range(4): a(f"v_permlane32_swap_b32 v{base+v}, v{tb+v}")
        for v in range(4): a(f"v_add_f32 v{base+v}, v{base+v}, v{tb+v}")
    def EX(lo, hi=None):
        hi = lo if hi is None else hi
        a(f"s_mov_b32 exec_lo, {hex(lo)}\ns_mov_b32 exec_hi, {hex(hi)}")
    def EXALL(): a("s_mov_b64 exec, -1")

    a(f"""
    s_cmp_ge_u32 s2, 256
    s_cbranch_scc1 L_exit
    s_load_dwordx16 s[16:31], s[0:1], 0
    s_load_dwordx8 s[32:39], s[0:1], 64
    s_load_dwordx4 s[40:43], s[0:1], 96
    v_and_b32 v1, 63, v0
    v_lshrrev_b32 v6, 6, v0
    v_readfirstlane_b32 s3, v6
    v_and_b32 v4, 15, v1
    v_lshrrev_b32 v5, 4, v1
    s_and_b32 s8, s2, 7
    s_lshr_b32 s9, s2, 3
    s_and_b32 s10, s9, 3
    s_lshl_b32 s4, s8, 2
    s_add_u32 s4, s4, s10          ; head
    s_lshr_b32 s5, s9, 2
    s_and_b32 s5, s5, 3            ; b
    s_lshr_b32 s6, s9, 4           ; split
    s_lshl_b32 s7, s5, 5
    s_add_u32 s7, s7, s4
    s_lshl_b32 s7, s7, 12
    s_add_u32 s7, s7, 3072
    s_lshl_b32 s10, s6, 9
    s_add_u32 s7, s7, s10
    s_lshl_b32 s10, s3, 6
    s_add_u32 s7, s7, s10
    s_mul_i32 s7, s7, 384
    s_mul_i32 s101, s8, 30
    s_add_u32 s101, s101, s9
    s_mul_i32 s88, s101, 1093
    s_lshr_b32 s88, s88, 16        ; ks = u/60
    s_mul_i32 s10, s88, 60
    s_sub_u32 s89, s101, s10       ; cbk
    s_mul_i32 s90, s101, 1366
    s_lshr_b32 s90, s90, 16        ; kq = u/48
    s_mul_i32 s10, s90, 48
    s_sub_u32 s91, s101, s10       ; qb
    s_mul_i32 s99, s2, 3277
    s_lshr_b32 s99, s99, 16        ; fsl = u/20
    s_mul_i32 s10, s99, 20
    s_sub_u32 s100, s2, s10        ; ksl
    v_lshrrev_b32 v6, 1, v4
    v_mul_u32_u24 v6, 384, v6
    v_and_b32 v7, 1, v4
    v_lshl_add_u32 v7, v7, 2, v5
    v_lshl_add_u32 v2, v7, 4, v6
    v_lshrrev_b32 v8, 3, v1
    v_mul_u32_u24 v6, 384, v8
    v_and_b32 v7, 7, v1
    v_lshl_add_u32 v3, v7, 4, v6
    v_mul_u32_u24 v8, 7680, v8
    v_lshl_add_u32 v8, v7, 4, v8
    v_mul_u32_u24 v9, 12288, v5
    v_lshl_add_u32 v9, v4, 4, v9
    s_mov_b32 s72, 0xaaaaaaaa
    s_mov_b32 s73, 0xaaaaaaaa
    s_mov_b32 s74, 0xff00ff00
    s_mov_b32 s75, 0xff00ff00
    s_mov_b32 s76, 0xffff0000
    s_mov_b32 s77, 0
    s_mov_b32 s78, 0
    s_mov_b32 s79, 0x0000ffff
    s_mov_b32 s80, 0
    s_mov_b32 s81, 0xffff0000
    s_mov_b32 s82, 0x00ff00ff
    s_mov_b32 s83, 0xff00ff00
    s_mov_b32 s92, 0
    s_mov_b32 s93, -1
    s_mov_b32 s84, {SPIN}
    s_mov_b32 {P0}, 0x07060503
    s_mov_b32 {P1}, 0x07060502
    s_mov_b32 {P2}, 0x07060501
    s_mov_b32 {U0}, 0x04000c0c
    s_mov_b32 {U1}, 0x0706000c
    s_mul_i32 s11, s88, 160
    s_lshl_b32 s12, s3, 3
    s_add_u32 s11, s11, s12
    s_mul_i32 s11, s11, 7680
    s_lshl_b32 s12, s89, 7
    s_add_u32 s11, s11, s12
    s_lshl_b32 s12, s3, 10
    s_lshl_b32 s13, s90, 7
    s_lshl_b32 s14, s3, 4
    s_add_u32 s13, s13, s14
    s_mul_i32 s13, s13, 12288
    s_lshl_b32 s14, s91, 8
    s_add_u32 s13, s13, s14
    s_lshl_b32 s14, s3, 12
    s_add_u32 s14, s14, {L_WQ}
    s_waitcnt lgkmcnt(0)
    s_load_dword {TAG}, s[42:43], {EPOCH}
    """)
    srd(56, 36, 4915200)
    srd(60, 22, 7864320)
    srd(52, 42, WSEND)
    srd(44, 18, 201326592)
    srd(48, 20, 201326592)
    if ts:
        srd(68, 42, 0x4000000)
        a("v_mov_b32 v63, 0")
    TS(0)
    a("s_cmp_eq_u32 s3, 0\ns_cbranch_scc0 L_p_dma")
    srd(64, 34, 5120)
    a(f"""
    v_mov_b32 v10, {L_CNT}
    v_mov_b32 v12, 0
    v_mov_b32 v13, 0
    ds_write_b64 v10, v[12:13]
    v_and_b32 v6, 3, v4
    v_mul_u32_u24 v11, 1280, v6
    v_lshl_add_u32 v11, v5, 4, v11
    s_mul_i32 s10, s88, 320
    """)
    for t in range(5):
        a(f"buffer_load_dwordx4 v[{160+4*t}:{163+4*t}], v11, {sC}, s10 offen offset:{t*64}")
    srd(64, 16, 5120)
    a(f"""
    v_lshrrev_b32 v7, 2, v4        ; tq
    v_mul_u32_u24 v16, 320, v7
    v_add_u32 v16, v16, v11        ; b*1280 + tq*320 + g*16
    v_mul_u32_u24 v17, 1280, v6
    v_lshl_add_u32 v17, v7, 5, v17
    v_lshl_add_u32 v17, v5, 3, v17 ; b*1280 + tq*32 + g*8
    s_lshl_b32 s10, s90, 8
    """)
    for i in range(5):
        a(f"buffer_load_dwordx4 v[{180+4*i}:{183+4*i}], v16, {sC}, 0 offen offset:{i*64}")
    a(f"buffer_load_dwordx2 v[200:201], v17, {sC}, s10 offen")
    a(f"buffer_load_dwordx2 v[202:203], v17, {sC}, s10 offen offset:128")
    a(f"""
    v_mul_u32_u24 v16, 1280, v5
    v_lshl_add_u32 v16, v4, 2, v16
    s_lshl_b32 s10, s100, 6
    buffer_load_dword v52, v16, {sC}, s10 offen
    """)
    a("L_p_dma:")
    a("s_cmp_ge_u32 s2, 240\ns_cbranch_scc1 L_p_nodma")
    for j in range(3):
        if j == 2: a("s_cmp_ge_u32 s3, 4\ns_cbranch_scc1 L_p_wq")
        a(f"s_add_u32 m0, s12, {L_WM + j*8192}")
        a(f"buffer_load_dwordx4 v8, {sA}, s11 offen nt lds")
        if j < 2: a(f"s_add_u32 s11, s11, {64*7680}")
    a("L_p_wq:")
    for i in range(4):
        a(f"s_add_u32 m0, s14, {i*1024}")
        a(f"buffer_load_dwordx4 v9, {sB}, s13 offen nt lds")
        if i < 3: a(f"s_add_u32 s13, s13, {4*12288}")
    a("L_p_nodma:")
    a("s_cmp_eq_u32 s3, 0\ns_cbranch_scc1 L_helper")

    KB, VB = 64, 160
    class Stream:
        def __init__(self, D):
            self.D = D; self.ops = []; self.last_pair = None
        def thr(self):
            if self.D and len(self.ops) >= self.D:
                a(f"s_waitcnt vmcnt({self.D-1})")
        def load(self, which, T, s):
            base = KB if which == 'k' else VB
            sr = sK if which == 'k' else sV
            vo = 2 if which == 'k' else 3
            pair = T // 2
            if pair != self.last_pair:
                a(f"s_add_u32 s8, s7, {pair*6144}"); self.last_pair = pair
            self.thr()
            r = base + T * 12 + s * 4
            a(f"buffer_load_dwordx4 v[{r}:{r+3}], v{vo}, {sr}, s8 offen offset:{(T%2)*3072 + s*128} nt")
            self.ops.append((which, T))
        def tile(self, which, T):
            for s in range(3): self.load(which, T, s)
        def wait(self, tag):
            if tag not in self.ops: return
            idx = max(i for i, o in enumerate(self.ops) if o == tag)
            n = len(self.ops) - 1 - idx
            a(f"s_waitcnt vmcnt({min(n, 63)})")
        def other(self, tag):
            self.thr()
            self.ops.append(tag)

    def wo_dma(st):
        srd(56, 24, 7864320)
        a(f"""
        s_mul_i32 s9, s2, 6554
        s_lshr_b32 s9, s9, 16          ; ob = u/10
        s_mul_i32 s10, s9, 10
        s_sub_u32 s10, s2, s10         ; oc
        s_lshl_b32 s9, s9, 8
        s_sub_u32 s12, s3, 4
        s_lshl_b32 s11, s12, 6
        s_add_u32 s9, s9, s11
        s_mul_i32 s9, s9, 1280
        s_lshl_b32 s10, s10, 7
        s_add_u32 s9, s9, s10
        v_lshrrev_b32 v6, 3, v1
        v_mul_u32_u24 v6, 1280, v6
        v_and_b32 v7, 7, v1
        v_lshl_add_u32 v6, v7, 4, v6
        s_lshl_b32 s10, s12, 13
        """)
        for i in range(8):
            st.other(('wo', 0))
            a(f"s_add_u32 m0, s10, {L_WO + i*1024}")
            a(f"buffer_load_dwordx4 v6, {sA}, s9 offen nt lds")
            if i < 7:
                a(f"s_add_u32 s9, s9, {8*1280}")
    def w1_dma(st):
        srd(56, 28, 1966080)
        srd(60, 30, 1966080)
        srd(64, 32, 1966080)
        a(f"""
        s_lshl_b32 s9, s100, 5
        s_lshl_b32 s10, s3, 3
        s_add_u32 s9, s9, s10
        s_mul_i32 s9, s9, 3072
        s_lshl_b32 s10, s99, 8
        s_add_u32 s9, s9, s10
        s_cmp_ge_u32 s2, 240
        s_cselect_b32 s9, 0x10000000, s9
        v_mul_u32_u24 v6, 3072, v5
        v_lshl_add_u32 v6, v4, 4, v6
        v_lshlrev_b32 v7, 4, v1
        s_lshl_b32 s10, s3, 11          ; lds w*2048
        s_sub_u32 s11, s2, {S2_0}
        s_mul_i32 s11, s11, 20480
        s_mul_i32 s12, s3, 5120
        s_add_u32 s11, s11, s12
        s_cmp_lt_u32 s2, {S2_0}
        s_cselect_b32 s11, 0x10000000, s11
        """)
        for i in range(2):
            st.other(('w1', 0))
            a(f"s_add_u32 m0, s10, {L_W1 + i*1024}")
            a(f"buffer_load_dwordx4 v6, {sA}, s9 offen nt lds")
            st.other(('w1', 0))
            a(f"s_add_u32 m0, s10, {L_W1 + 8192 + i*1024}")
            a(f"buffer_load_dwordx4 v6, {sB}, s9 offen nt lds")
            if i < 1: a(f"s_add_u32 s9, s9, {4*3072}")
        for i in range(5):
            st.other(('wd', 0))
            a(f"s_add_u32 m0, s12, {L_WD + i*1024}")
            a(f"buffer_load_dwordx4 v7, {sC}, s11 offen nt lds")
            if i < 4: a("s_add_u32 s11, s11, 1024")

    def attention(st, nv1, kind):
        st.last_pair = None
        a(f"""
        v_and_b32 v6, 1, v4
        v_lshl_add_u32 v6, v6, 2, v5
        v_lshlrev_b32 v6, 4, v6
        v_add_u32 v6, {L_Q}, v6
        ds_read_b128 v[8:11], v6
        ds_read_b128 v[12:15], v6 offset:128
        ds_read_b128 v[16:19], v6 offset:256
        """)
        nxt = nv1
        def more():
            nonlocal nxt
            if nxt < 8:
                st.tile('v', nxt); nxt += 1
        more()
        a(f"""
        v_and_b32 v6, 1, v4
        v_mov_b32 v7, 0xffff
        v_lshlrev_b32 v6, 4, v6
        v_lshlrev_b32 v7, v6, v7
        v_bfe_u32 v6, v4, 1, 2            ; r
        v_cmp_eq_u32 vcc, 0, v6
        v_cndmask_b32 v52, 0, v7, vcc
        v_cmp_eq_u32 vcc, 1, v6
        v_cndmask_b32 v53, 0, v7, vcc
        v_cmp_eq_u32 vcc, 2, v6
        v_cndmask_b32 v54, 0, v7, vcc
        v_cmp_eq_u32 vcc, 3, v6
        v_cndmask_b32 v55, 0, v7, vcc
        s_waitcnt lgkmcnt(0)
        """)
        for T in range(8):
            st.wait(('k', T))
            Dd = 20 + 4 * T
            for s in range(3):
                k = KB + T * 12 + s * 4
                c = "0" if s == 0 else f"v[{Dd}:{Dd+3}]"
                a(f"v_mfma_f32_16x16x32_bf16 v[{Dd}:{Dd+3}], v[{k}:{k+3}], v[{8+4*s}:{11+4*s}], {c}")
        more()
        for T in range(8):
            Dd = 20 + 4 * T
            a(f"v_cndmask_b32 v{Dd}, v{Dd}, v{Dd+1}, {mODD}")
            a(f"v_cndmask_b32 v{Dd+2}, v{Dd+2}, v{Dd+3}, {mODD}")
            a(f"v_cndmask_b32 v{Dd}, v{Dd}, v{Dd+2}, {mNHI}")
        S = [20 + 4 * T for T in range(8)]
        for T in range(8):
            a(f"v_add_f32_dpp v{S[T]}, v{S[T]}, v{S[T]} quad_perm:[1,0,3,2] row_mask:0xf bank_mask:0xf")
        for T in range(0, 8, 2):
            rnd2(S[T], S[T+1], S[T] + 1)
        for T in range(8):
            a(f"v_mul_f32 v{S[T]}, {hex(SCALE)}, v{S[T]}")
        for T in range(0, 8, 2):
            rnd2(S[T], S[T+1], S[T] + 1)
        a(f"""
        v_max3_f32 v56, v{S[0]}, v{S[1]}, v{S[2]}
        v_max3_f32 v56, v56, v{S[3]}, v{S[4]}
        v_max3_f32 v56, v56, v{S[5]}, v{S[6]}
        v_max_f32 v56, v56, v{S[7]}
        """)
        ror(56, 8, "v_max_f32")
        xrow_sum(56, 58, "v_max_f32")
        for T in range(8):
            a(f"v_sub_f32 v{S[T]}, v{S[T]}, v56")
        for T in range(8):
            a(f"v_mul_f32 v{S[T]}, {hex(LOG2E)}, v{S[T]}")
        for T in range(8):
            a(f"v_exp_f32 v{S[T]}, v{S[T]}")
        a(f"v_add_f32 v57, v{S[0]}, v{S[1]}")
        for T in range(2, 8):
            a(f"v_add_f32 v57, v57, v{S[T]}")
        for T in range(8):
            a(f"v_cvt_pk_bf16_f32 v{8+T}, v{S[T]}, v{S[T]}")
        ror(57, 8)
        xrow_sum(57, 58)
        a(f"""
        s_lshl_b32 s9, s3, 3
        s_add_u32 s9, s9, {L_MLW}
        v_mov_b32 v6, s9
        ds_write_b64 v6, v[56:57]
        """)
        TS(2)
        def pv(T):
            A = 32 + 4 * (T % 2)
            for r in range(4):
                a(f"v_and_b32 v{A+r}, v{8+T}, v{52+r}")
            st.wait(('v', T))
            for s in range(3):
                v = VB + T * 12 + s * 4
                Dd = 20 + 4 * s
                c = "0" if T == 0 else f"v[{Dd}:{Dd+3}]"
                a(f"v_mfma_f32_16x16x32_bf16 v[{Dd}:{Dd+3}], v[{A}:{A+3}], v[{v}:{v+3}], {c}")
        pvn = 0
        while nxt < 8:
            more()
            while pvn <= nxt - 3:
                pv(pvn); pvn += 1
        st.D = 0
        if kind == 'b': wo_dma(st)
        else: w1_dma(st)
        TS(3)
        while pvn < 8:
            pv(pvn); pvn += 1
        a("s_branch L_tail")

    st = Stream(0)
    kl = [('k', T, s) for T in range(8) for s in range(3)]
    D0 = min(3, D1)
    for (w, T, s) in kl[:D0]: st.load(w, T, s)
    a("s_barrier")
    a(f"""
    v_mov_b32 v10, {L_CNT}
    v_mov_b32 v11, 1
    s_waitcnt vmcnt({D0+4})
    """)
    EX(1, 0)
    a("ds_add_u32 v10, v11")
    a(f"s_waitcnt vmcnt({D0})")
    a("ds_add_u32 v10, v11 offset:4")
    EXALL()
    seq = kl[D0:] + [('v', T, s) for T in range(NV1) for s in range(3)]
    for i, (w, T, s) in enumerate(seq):
        st.D = D1 if (i + D0) < N1 else D
        st.load(w, T, s)
    st.D = D
    TS(1)
    a(f"s_waitcnt lgkmcnt(0)\ns_add_u32 {TAG}, {TAG}, 1")
    a("s_barrier")
    a("s_cmp_ge_u32 s3, 4\ns_cbranch_scc1 L_att_b")
    st2 = copy.deepcopy(st)
    attention(st, NV1, 'a')
    a("L_att_b:")
    attention(st2, NV1, 'b')

    a("L_helper:")
    hk = Stream(0)
    hk.tile('k', 0); hk.tile('k', 1)
    a(f"s_setprio 3\ns_waitcnt lgkmcnt(0)\ns_add_u32 {TAG}, {TAG}, 1\ns_barrier")
    a("s_cmp_lt_u32 s2, 240\ns_cbranch_scc1 L_h_unit")
    hk2 = Stream(0)
    for T in range(2, 8): hk2.tile('k', T)
    a("s_branch L_h_nounit2")
    a("L_h_unit:")
    a("s_waitcnt vmcnt(21)")
    for t in range(5):
        for r in range(4):
            src = 160 + 4 * t + r
            a(f"""
            v_lshlrev_b32 v8, 16, v{src}
            v_and_b32 v9, 0xffff0000, v{src}
            v_mul_f32 v10, {hex(LOG2E | 0x80000000)}, v8
            v_mul_f32 v11, {hex(LOG2E | 0x80000000)}, v9
            v_exp_f32 v10, v10
            v_exp_f32 v11, v11
            v_add_f32 v10, 1.0, v10
            v_add_f32 v11, 1.0, v11
            v_rcp_f32 v10, v10
            v_rcp_f32 v11, v11
            v_mul_f32 v8, v8, v10
            v_mul_f32 v9, v9, v11
            v_cvt_pk_bf16_f32 v{src}, v8, v9
            """)
    def lpoll(name, off):
        a(f"""
        {name}:
        ds_read_b32 v11, v10 offset:{off}
        s_waitcnt lgkmcnt(0)
        v_cmp_gt_u32 vcc, 7, v11
        s_cbranch_vccz {name}_ok
        s_sleep 1
        s_sub_u32 s84, s84, 1
        s_cmp_lg_u32 s84, 0
        s_cbranch_scc1 {name}
        {name}_ok:
        """)
    a(f"""
    v_lshrrev_b32 v6, 2, v4
    v_and_b32 v7, 3, v4
    v_lshl_add_u32 v6, v5, 3, v6   ; 8g + r
    v_lshlrev_b32 v8, 7, v6
    v_lshl_add_u32 v8, v7, 3, v8
    v_lshlrev_b32 v53, 8, v6
    v_lshl_add_u32 v53, v7, 3, v53
    v_mov_b32 v10, {L_CNT}
    s_waitcnt vmcnt(10)
    """)
    lpoll("L_h_lpoll", 0)
    TS(13)
    def wm_reads(t):
        for nt in range(4):
            r = 208 + (t % 2) * 16 + nt * 4
            off = L_WM + t * 4096 + nt * 32
            a(f"ds_read_b64_tr_b16 v[{r}:{r+1}], v8 offset:{off}")
            a(f"ds_read_b64_tr_b16 v[{r+2}:{r+3}], v8 offset:{off+512}")
    wm_reads(0)
    for t in range(5):
        a("s_waitcnt lgkmcnt(0)")
        if t < 4: wm_reads(t + 1)
        for nt in range(4):
            r = 208 + (t % 2) * 16 + nt * 4
            Dd = 20 + 4 * nt
            c = "0" if t == 0 else f"v[{Dd}:{Dd+3}]"
            a(f"v_mfma_f32_16x16x32_bf16 v[{Dd}:{Dd+3}], v[{160+4*t}:{163+4*t}], v[{r}:{r+3}], {c}")
    a(f"""
    v_lshlrev_b32 v9, 2, v1
    s_mul_i32 s11, s88, {4*15360}
    s_lshl_b32 s12, s89, 8
    s_add_u32 s11, s11, s12
    s_add_u32 s11, s11, {MODP}
    """)
    sel_q4([36, 40, 44, 48], [[20 + 4 * q + v for v in range(4)] for q in range(4)])
    for v in range(4): quad_gather(36 + 4 * v, 36 + 4 * v)
    EX(0x11111111)
    for v in range(4):
        a(f"buffer_store_dwordx4 v[{36+4*v}:{39+4*v}], v9, {sWS}, s11 offen sc1")
        if v < 3: a("s_add_u32 s11, s11, 15360")
    EXALL()
    TS(1)
    hk.tile('k', 2); hk.tile('k', 3)
    XU = 208
    for i in range(20):
        a(f"v_lshlrev_b32 v{XU+2*i}, 16, v{180+i}\nv_and_b32 v{XU+1+2*i}, 0xffff0000, v{180+i}")
    a(f"v_add_f32 v10, v{XU}, v{XU+1}")
    for i in range(2, 40):
        a(f"v_add_f32 v10, v10, v{XU+i}")
    ror(10, 4); ror(10, 8); xrow_sum(10, 11)
    a(f"v_mul_f32 v10, {hex(0x3ACCCCCD)}, v10")
    for i in range(40):
        a(f"v_sub_f32 v{XU+i}, v{XU+i}, v10")
    a(f"v_mul_f32 v12, v{XU}, v{XU}")
    for i in range(1, 40):
        a(f"v_fmac_f32 v12, v{XU+i}, v{XU+i}")
    ror(12, 4); ror(12, 8); xrow_sum(12, 11)
    a(f"v_mul_f32 v12, {hex(0x3ACCCCCD)}, v12")
    rnd2(10, 12, 11)
    a(f"v_add_f32 v12, {hex(0x3727C5AC)}, v12")
    rnd1(12)
    a("v_sqrt_f32 v12, v12")
    rnd1(12)
    a("v_rcp_f32 v12, v12")
    for i in range(4):
        a(f"v_lshlrev_b32 v{44+2*i}, 16, v{200+i}\nv_and_b32 v{45+2*i}, 0xffff0000, v{200+i}")
    for i in range(8):
        a(f"v_sub_f32 v{44+i}, v{44+i}, v10")
    for i in range(0, 8, 2): rnd2(44 + i, 45 + i, 11)
    for i in range(8):
        a(f"v_mul_f32 v{44+i}, v{44+i}, v12")
    for i in range(0, 8, 2): rnd2(44 + i, 45 + i, 11)
    a(f"""
    v_mov_b32 v10, {L_CNT}
    s_waitcnt vmcnt(16)
    """)
    lpoll("L_h_lpoll2", 4)
    def wq_reads(t, base):
        for nt in range(8):
            r = base + nt * 4
            off = L_WQ + t * 8192 + nt * 32
            a(f"ds_read_b64_tr_b16 v[{r}:{r+1}], v53 offset:{off}")
            a(f"ds_read_b64_tr_b16 v[{r+2}:{r+3}], v53 offset:{off+1024}")
            if nt == 3: a("s_waitcnt lgkmcnt(4)")
    wq_reads(0, 160)
    a(f"""
    v_and_b32 v6, 3, v4
    v_lshrrev_b32 v7, 2, v4
    v_mul_u32_u24 v8, 15360, v6
    v_lshl_add_u32 v8, v7, 6, v8
    v_lshl_add_u32 v8, v5, 4, v8     ; b*15360 + tq*64 + g*16
    s_lshl_b32 s13, s90, 9           ; kq*512
    s_add_u32 s13, s13, {MODP}
    {'s_sleep %d' % hpre[0] if hpre[0] else ''}
    L_h_poll1:
    s_mov_b32 s11, s13
    """)
    for ks in range(4):
        r = 192 + ks * 16
        for j, off in enumerate((0, 256, 2560, 2816)):
            a(f"buffer_load_dwordx4 v[{r+4*j}:{r+4*j+3}], v8, {sWS}, s11 offen offset:{off} sc1")
        if ks < 3: a("s_add_u32 s11, s11, 61440")
    a("s_waitcnt vmcnt(0)")
    chk([195 + 4 * i for i in range(16)], 10, "L_h_poll1", sleep=2)
    TS(4)
    hk.tile('k', 4); hk.tile('k', 5)
    for i in range(16): unpack4(192 + 4 * i)
    for i in range(16):
        a(f"v_add_f32 v{192+i}, v{192+i}, v{208+i}\nv_add_f32 v{224+i}, v{224+i}, v{240+i}")
    for i in range(16):
        a(f"v_add_f32 v{192+i}, v{192+i}, v{224+i}")
    wq_reads(1, 224)
    for i in range(0, 16, 2): rnd2(192 + i, 193 + i, 11)
    for i in range(8):
        a(f"v_add_f32 v{200+i}, 1.0, v{200+i}")
    for i in range(0, 8, 2): rnd2(200 + i, 201 + i, 11)
    for i in range(8):
        a(f"v_mul_f32 v{44+i}, v{44+i}, v{200+i}")
    for i in range(0, 8, 2): rnd2(44 + i, 45 + i, 11)
    for i in range(8):
        a(f"v_add_f32 v{44+i}, v{44+i}, v{192+i}")
    for i in range(4):
        a(f"v_cvt_pk_bf16_f32 v{40+i}, v{44+2*i}, v{45+2*i}")
    a(f"""
    v_lshlrev_b32 v8, 8, v6
    v_lshl_add_u32 v9, v5, 4, v8       ; b*256 + g*16
    v_add_u32 v9, {L_HB}, v9
    v_lshl_add_u32 v8, v7, 5, v8
    v_lshl_add_u32 v8, v5, 3, v8       ; b*256 + tq*32 + g*8
    v_add_u32 v8, {L_HB}, v8
    s_waitcnt lgkmcnt(0)
    ds_write_b64 v8, v[40:41]
    ds_write_b64 v8, v[42:43] offset:128
    s_waitcnt lgkmcnt(0)
    ds_read_b128 v[192:195], v9
    ds_read_b128 v[196:199], v9 offset:64
    ds_read_b128 v[200:203], v9 offset:128
    ds_read_b128 v[204:207], v9 offset:192
    s_waitcnt lgkmcnt(0)
    """)
    for t in range(4):
        base = 160 if t % 2 == 0 else 224
        if t >= 2: a("s_waitcnt lgkmcnt(0)")
        for nt in range(8):
            r = base + nt * 4
            Dd = 20 + 4 * nt
            c = "0" if t == 0 else f"v[{Dd}:{Dd+3}]"
            a(f"v_mfma_f32_16x16x32_bf16 v[{Dd}:{Dd+3}], v[{192+4*t}:{195+4*t}], v[{r}:{r+3}], {c}")
        if t < 2:
            a("s_nop 7")
            wq_reads(t + 2, base)
    a(f"""
    v_lshlrev_b32 v9, 2, v1
    s_mul_i32 s11, s90, {4*24576}
    s_lshl_b32 s12, s91, 9
    s_add_u32 s11, s11, s12
    s_add_u32 s11, s11, {QP}
    """)
    sel_q4([160, 164, 168, 172], [[20 + 4 * q + v for v in range(4)] for q in range(4)])
    sel_q4([176, 180, 184, 188], [[36 + 4 * q + v for v in range(4)] for q in range(4)])
    for v in range(8): quad_gather(160 + 4 * v, 160 + 4 * v)
    EX(0x11111111)
    for v in range(4):
        a(f"buffer_store_dwordx4 v[{160+4*v}:{163+4*v}], v9, {sWS}, s11 offen sc1")
        a(f"buffer_store_dwordx4 v[{176+4*v}:{179+4*v}], v9, {sWS}, s11 offen offset:256 sc1")
        if v < 3: a("s_add_u32 s11, s11, 24576")
    EXALL()
    TS(5)
    hk.tile('k', 6); hk.tile('k', 7)
    a(f"""
    v_mul_u32_u24 v13, 15360, v5
    v_lshrrev_b32 v14, 1, v4
    v_lshl_add_u32 v13, v14, 4, v13     ; b*15360 + (n>>1)*16
    s_lshl_b32 s13, s100, 7
    s_add_u32 s13, s13, {MODP + 2*2560}
    L_h_poll3:
    s_mov_b32 s11, s13
    """)
    for ks in range(4):
        r = 192 + ks * 16
        a(f"buffer_load_dwordx4 v[{r}:{r+3}], v13, {sWS}, s11 offen sc1")
        a(f"buffer_load_dwordx4 v[{r+4}:{r+7}], v13, {sWS}, s11 offen offset:2560 sc1")
        a("s_add_u32 s12, s11, 5120")
        a(f"buffer_load_dwordx4 v[{r+8}:{r+11}], v13, {sWS}, s12 offen sc1")
        a(f"buffer_load_dwordx4 v[{r+12}:{r+15}], v13, {sWS}, s12 offen offset:2560 sc1")
        if ks < 3: a("s_add_u32 s11, s11, 61440")
    a("s_waitcnt vmcnt(0)")
    chk([195 + 4 * i for i in range(16)], 10, "L_h_poll3", sleep=2)
    for i in range(16): unpack4(192 + 4 * i)
    for i in range(16):
        a(f"v_add_f32 v{192+i}, v{192+i}, v{208+i}\nv_add_f32 v{224+i}, v{224+i}, v{240+i}")
    for i in range(16):
        a(f"v_add_f32 v{192+i}, v{192+i}, v{224+i}")
    for ty in range(4):
        a(f"v_cndmask_b32 v{208+2*ty}, v{192+4*ty}, v{194+4*ty}, {mODD}")
        a(f"v_cndmask_b32 v{209+2*ty}, v{193+4*ty}, v{195+4*ty}, {mODD}")
    rnd2(208, 209, 11); rnd2(212, 213, 11); rnd2(214, 215, 11)
    a(f"""
    v_cvt_pk_bf16_f32 v210, v210, v211
    v_add_f32 v212, 1.0, v212
    v_add_f32 v213, 1.0, v213
    v_cvt_pk_bf16_f32 v211, v212, v213
    v_lshlrev_b32 v212, 16, v211
    v_and_b32 v213, 0xffff0000, v211
    v_lshlrev_b32 v216, 16, v52
    v_and_b32 v217, 0xffff0000, v52
    v_lshlrev_b32 v8, 3, v1
    v_add_u32 v8, {L_CC}, v8
    ds_write_b64 v8, v[208:209]
    ds_write_b64 v8, v[212:213] offset:512
    ds_write_b64 v8, v[216:217] offset:1024
    ds_write_b64 v8, v[214:215] offset:1536
    v_lshlrev_b32 v8, 2, v1
    v_add_u32 v8, {L_SA}, v8
    ds_write_b32 v8, v211
    ds_write_b32 v8, v210 offset:256
    """)
    a("L_h_nounit2:")
    a(f"""
    v_min_u32 v8, 47, v1
    v_lshlrev_b32 v8, 4, v8
    s_mul_i32 s11, s5, 24576
    s_mul_i32 s12, s4, 768
    s_add_u32 s11, s11, s12
    s_add_u32 s11, s11, {QP}
    L_h_poll2:
    s_mov_b32 s12, s11
    """)
    for kq in range(5):
        a(f"buffer_load_dwordx4 v[{20+4*kq}:{23+4*kq}], v8, {sWS}, s12 offen sc1")
        if kq < 4: a(f"s_add_u32 s12, s12, {4*24576}")
    a("s_waitcnt vmcnt(0)")
    chk(range(23, 40, 4), 9, "L_h_poll2", sleep=2)
    sth = Stream(0)
    a("s_waitcnt lgkmcnt(0)")
    for T in range(8): sth.tile('v', T)
    for i in range(5): unpack4(20 + 4 * i)
    for v in range(4):
        a(f"v_add_f32 v{20+v}, v{20+v}, v{24+v}\nv_add_f32 v{28+v}, v{28+v}, v{32+v}")
    for v in range(4):
        a(f"v_add_f32 v{20+v}, v{20+v}, v{28+v}")
    for v in range(4):
        a(f"v_add_f32 v{20+v}, v{20+v}, v{36+v}")
    a(f"""
    v_cvt_pk_bf16_f32 v10, v20, v21
    v_cvt_pk_bf16_f32 v11, v22, v23
    v_lshrrev_b32 v8, 1, v8
    v_add_u32 v8, {L_Q}, v8
    ds_write_b64 v8, v[10:11]
    """)
    TS(6)
    a("s_waitcnt lgkmcnt(0)\ns_setprio 0\ns_barrier")
    attention(sth, 8, 'a')

    a("L_tail:")
    a(f"""
    v_lshrrev_b32 v6, 3, v4            ; u
    v_mul_u32_u24 v6, 768, v6
    v_and_b32 v7, 7, v4
    v_lshl_add_u32 v6, v7, 5, v6
    v_and_b32 v7, 1, v5
    v_lshl_add_u32 v6, v7, 4, v6
    s_mul_i32 s8, s3, 1536
    s_add_u32 s8, s8, {L_RED}
    v_add_u32 v6, s8, v6
    s_nop 4
    s_mov_b64 exec, {mRED}
    ds_write_b128 v6, v[20:23]
    ds_write_b128 v6, v[24:27] offset:256
    ds_write_b128 v6, v[28:31] offset:512
    s_mov_b64 exec, -1
    s_waitcnt lgkmcnt(0)
    """)
    TS(7)
    a("s_barrier")
    a("s_cmp_ge_u32 s3, 4\ns_cbranch_scc1 L_wo")
    a("s_cmp_eq_u32 s3, 3\ns_cbranch_scc1 L_t_w3")
    a(f"""
    v_mov_b32 v6, {L_MLW}
    ds_read_b128 v[20:23], v6
    ds_read_b128 v[24:27], v6 offset:16
    ds_read_b128 v[28:31], v6 offset:32
    ds_read_b128 v[32:35], v6 offset:48
    v_lshlrev_b32 v7, 2, v0
    v_add_u32 v6, {L_RED}, v7
    """)
    for i in range(16):
        a(f"ds_read_b32 v{64+i}, v6 offset:{i*768}")
    a(f"""
    s_lshl_b32 s8, s5, 1
    s_add_u32 s8, s8, s6
    s_mul_i32 s8, s8, 96
    s_mul_i32 s9, s4, 3
    s_add_u32 s8, s8, s9
    s_add_u32 s8, s8, s3
    s_mul_i32 s8, s8, 384
    s_add_u32 s8, s8, {OPX}
    v_lshlrev_b32 v7, 2, v1            ; lane*4 (granule (l>>2)*16 for l%4==0)
    s_waitcnt lgkmcnt(15)
    v_max3_f32 v8, v20, v22, v24
    v_max3_f32 v8, v8, v26, v28
    v_max3_f32 v8, v8, v30, v32
    v_max_f32 v8, v8, v34
    """)
    for w in range(8):
        a(f"v_sub_f32 v{20+2*w}, v{20+2*w}, v8")
    for w in range(8):
        a(f"v_mul_f32 v{20+2*w}, {hex(LOG2E)}, v{20+2*w}")
    for w in range(8):
        a(f"v_exp_f32 v{20+2*w}, v{20+2*w}")
    a("s_waitcnt lgkmcnt(0)")
    for w in range(8):
        a(f"v_add_f32 v{64+2*w}, v{64+2*w}, v{65+2*w}")
    a("v_mul_f32 v12, v20, v64\nv_mul_f32 v9, v20, v21")
    for w in range(1, 8):
        a(f"v_fmac_f32 v12, v{20+2*w}, v{64+2*w}\nv_fmac_f32 v9, v{20+2*w}, v{21+2*w}")
    a(f"v_mov_b32 v10, 0\nv_mov_b32 v11, {TAG}")
    quad_gather(12, 12)
    EX(0x11111111)
    a(f"buffer_store_dwordx4 v[12:15], v7, {sWS}, s8 offen sc1")
    EX(1, 0)
    a(f"buffer_store_dwordx4 v[8:11], v7, {sWS}, s8 offen offset:256 sc1")
    EXALL()
    TS(8)
    a("s_cmp_ge_u32 s2, 240\ns_cbranch_scc1 L_end")
    a("s_waitcnt vmcnt(7)\ns_branch L_t_b2")
    a("L_t_w3:")
    a("s_cmp_ge_u32 s2, 240\ns_cbranch_scc1 L_end")
    a("s_waitcnt vmcnt(5)")
    a("L_t_b2:")
    a("s_barrier\ns_branch L_s1")

    a("L_wo:")
    a("s_cmp_ge_u32 s2, 240\ns_cbranch_scc1 L_end")
    a(f"""
    s_sub_u32 s8, s3, 4               ; w4
    v_lshrrev_b32 v6, 2, v4
    v_and_b32 v7, 3, v4
    v_lshl_add_u32 v6, v5, 3, v6
    v_lshlrev_b32 v6, 7, v6
    v_lshl_add_u32 v6, v7, 3, v6
    s_lshl_b32 s9, s8, 13
    s_add_u32 s9, s9, {L_WO}
    v_add_u32 v6, s9, v6
    s_mul_i32 s9, s2, 6554
    s_lshr_b32 s9, s9, 16          ; ob
    s_mul_i32 s10, s9, 10
    s_sub_u32 s10, s2, s10         ; oc
    v_and_b32 v12, 7, v4           ; s + 2b
    v_lshrrev_b32 v7, 3, v4        ; th
    v_mul_u32_u24 v9, {96*384}, v12
    v_lshl_add_u32 v8, v7, 7, v9
    v_lshl_add_u32 v8, v5, 5, v8   ; (2b+s)*36864 + th*128 + g*32
    s_lshl_b32 s11, s9, 2
    s_add_u32 s11, s11, s8
    s_mul_i32 s11, s11, 384
    s_add_u32 s11, s11, {OPX}
    v_lshrrev_b32 v10, 1, v5
    v_lshlrev_b32 v10, 10, v10
    v_lshl_add_u32 v10, v4, 4, v10
    v_and_b32 v11, 1, v5
    v_lshl_add_u32 v10, v11, 3, v10
    s_lshl_b32 s13, s8, 11
    s_add_u32 s13, s13, {L_WR}
    v_add_u32 v10, s13, v10
    v_lshlrev_b32 v13, 2, v1
    s_lshl_b32 s13, s8, 8
    s_add_u32 s14, s13, {L_WR}
    v_add_u32 v14, s14, v13
    s_mul_i32 s10, s10, 24
    s_add_u32 s10, s10, s9
    s_lshl_b32 s10, s10, 10
    s_add_u32 s10, s10, s13
    s_add_u32 s10, s10, {AM}
    s_waitcnt vmcnt(0)
    """)
    for t in range(2):
        for nt in range(4):
            r = 64 + (t * 4 + nt) * 4
            a(f"ds_read_b64_tr_b16 v[{r}:{r+1}], v6 offset:{t*4096 + nt*32}")
            a(f"ds_read_b64_tr_b16 v[{r+2}:{r+3}], v6 offset:{t*4096 + nt*32 + 512}")
    TS(8)
    if pre[0]: a(f"s_sleep {pre[0]}")
    a("L_wo_poll:")
    a(f"buffer_load_dwordx4 v[96:99], v8, {sWS}, s11 offen sc1")
    a(f"buffer_load_dwordx4 v[100:103], v8, {sWS}, s11 offen offset:16 sc1")
    a(f"buffer_load_dwordx4 v[104:107], v9, {sWS}, s11 offen offset:256 sc1")
    a("s_waitcnt vmcnt(0)")
    chk([99, 103, 107], 11, "L_wo_poll", sleep=intv[0])
    TS(9)
    a(f"""
    v_mov_b32_dpp v106, v104 quad_perm:[1,0,3,2] row_mask:0xf bank_mask:0xf
    v_mov_b32_dpp v107, v105 quad_perm:[1,0,3,2] row_mask:0xf bank_mask:0xf
    v_max_f32 v12, v104, v106
    v_sub_f32 v104, v104, v12
    v_sub_f32 v106, v106, v12
    v_mul_f32 v104, {hex(LOG2E)}, v104
    v_mul_f32 v106, {hex(LOG2E)}, v106
    v_exp_f32 v104, v104
    v_exp_f32 v106, v106
    """)
    unpack4(96); unpack4(100)
    a(f"""
    v_mul_f32 v105, v105, v104
    v_fmac_f32 v105, v107, v106
    v_rcp_f32 v105, v105
    s_nop 0
    v_mul_f32 v104, v104, v105
    """)
    for i in range(8):
        a(f"v_mul_f32 v{96+i}, v{96+i}, v104")
    for i in range(8):
        a(f"v_add_f32_dpp v{96+i}, v{96+i}, v{96+i} quad_perm:[1,0,3,2] row_mask:0xf bank_mask:0xf")
    for i in range(4):
        a(f"v_cvt_pk_bf16_f32 v{108+i}, v{96+2*i}, v{97+2*i}")
    a("s_waitcnt lgkmcnt(0)")
    for nt in range(4):
        for t in range(2):
            Dd = 20 + (nt * 2 + t) * 4
            rb = 64 + (t * 4 + nt) * 4
            a(f"v_mfma_f32_16x16x32_bf16 v[{Dd}:{Dd+3}], v[108:111], v[{rb}:{rb+3}], 0")
    for nt in range(4):
        Dd = 20 + nt * 8
        a(f"v_cndmask_b32 v{112+2*nt}, v{Dd}, v{Dd+4}, {mHI}")
        a(f"v_cndmask_b32 v{113+2*nt}, v{Dd+2}, v{Dd+6}, {mHI}")
        a(f"ds_write_b64 v10, v[{112+2*nt}:{113+2*nt}] offset:{nt*256}")
    a("s_waitcnt lgkmcnt(0)\ns_barrier")
    for i in range(8):
        a(f"ds_read_b32 v{20+i}, v14 offset:{i*1024}")
    a("s_waitcnt lgkmcnt(0)")
    a("""
    v_add_f32 v20, v20, v21
    v_add_f32 v22, v22, v23
    v_add_f32 v24, v24, v25
    v_add_f32 v26, v26, v27
    v_add_f32 v20, v20, v22
    v_add_f32 v24, v24, v26
    v_add_f32 v20, v20, v24
    """)
    quad_gather(20, 20)
    EX(0x11111111)
    a(f"buffer_store_dwordx4 v[20:23], v13, {sWS}, s10 offen sc1")
    EXALL()
    TS(10)

    a("L_s1:")
    a(f"""
    v_lshrrev_b32 v6, 2, v4         ; r / j2
    v_and_b32 v7, 3, v4             ; c / b
    v_lshl_add_u32 v16, v5, 3, v6   ; 8g + r
    v_lshlrev_b32 v16, 8, v16
    v_lshl_add_u32 v16, v7, 3, v16
    s_lshl_b32 s8, s3, 5
    s_add_u32 s8, s8, {L_W1}
    v_add_u32 v16, s8, v16
    ds_read_b64_tr_b16 v[64:65], v16
    ds_read_b64_tr_b16 v[66:67], v16 offset:1024
    ds_read_b64_tr_b16 v[68:69], v16 offset:8192
    ds_read_b64_tr_b16 v[70:71], v16 offset:9216
    v_and_b32 v17, 7, v4
    v_lshlrev_b32 v17, 6, v17
    v_lshl_add_u32 v17, v5, 4, v17
    v_add_u32 v17, {L_SA}, v17
    ds_read_b128 v[72:75], v17
    v_lshlrev_b32 v18, 7, v7
    v_lshl_add_u32 v18, v5, 5, v18
    v_lshl_add_u32 v18, v6, 3, v18
    v_add_u32 v19, {L_CC}, v18
    ds_read_b64 v[76:77], v19              ; ga
    ds_read_b64 v[78:79], v19 offset:512   ; cb1
    ds_read_b64 v[80:81], v19 offset:1024  ; x
    v_add_u32 v19, {L_AR}, v18
    s_lshl_b32 s8, s99, 3
    s_add_u32 s8, s8, s3
    s_mul_i32 s8, s8, 20
    s_add_u32 s8, s8, s100
    s_lshl_b32 s9, s8, 10
    s_add_u32 s9, s9, {CMS}
    s_lshl_b32 s10, s8, 9
    s_add_u32 s10, s10, {CM}
    s_lshl_b32 s11, s8, 6
    s_add_u32 s11, s11, {CST}
    v_lshlrev_b32 v8, 4, v1
    s_waitcnt lgkmcnt(3)
    v_mfma_f32_16x16x32_bf16 v[24:27], v[72:75], v[64:67], 0
    v_mfma_f32_16x16x32_bf16 v[28:31], v[72:75], v[68:71], 0
    s_lshr_b32 s12, s100, 1
    s_mul_i32 s12, s12, 24
    s_mul_i32 s13, s3, 6
    s_add_u32 s12, s12, s13
    s_lshl_b32 s12, s12, 10
    s_and_b32 s13, s100, 1
    s_lshl_b32 s13, s13, 9
    s_add_u32 s12, s12, s13
    s_add_u32 s12, s12, {AM}
    s_add_u32 s13, s12, 4096
    v_lshrrev_b32 v9, 5, v1
    v_and_b32 v10, 31, v1
    v_lshlrev_b32 v11, 10, v9
    v_lshl_add_u32 v11, v10, 4, v11
    v_lshlrev_b32 v9, 9, v9
    v_lshl_add_u32 v9, v10, 2, v9
    s_lshl_b32 s14, s3, 10
    s_add_u32 s14, s14, {L_AR}
    v_add_u32 v9, s14, v9
    """)
    for v in range(4):
        a(f"v_cndmask_b32 v{24+v}, v{24+v}, v{28+v}, {mHI}")
    pack4(24, 24, 25, 26, 27)
    if not nocms: a(f"buffer_store_dwordx4 v[24:27], v8, {sWS}, s9 offen sc1")
    a("s_cmp_ge_u32 s3, 4\ns_cbranch_scc1 L_s1_b3")
    if pre[1]: a(f"s_sleep {pre[1]}")
    a("L_s1_poll:")
    a(f"buffer_load_dwordx4 v[96:99], v11, {sWS}, s12 offen sc1")
    a(f"buffer_load_dwordx4 v[100:103], v11, {sWS}, s12 offen offset:2048 sc1")
    a(f"buffer_load_dwordx4 v[104:107], v11, {sWS}, s13 offen sc1")
    a("s_waitcnt vmcnt(0)")
    chk([99, 103, 107], 12, "L_s1_poll", sleep=intv[1])
    TS(9)
    unpack4(96); unpack4(100); unpack4(104)
    for v in range(4):
        a(f"v_add_f32 v{96+v}, v{96+v}, v{100+v}")
    for v in range(4):
        a(f"v_add_f32 v{96+v}, v{96+v}, v{104+v}")
    for v in range(4):
        a(f"ds_write_b32 v9, v{96+v} offset:{v*128}")
    a("L_s1_b3:")
    a("s_waitcnt lgkmcnt(0)\ns_barrier")
    for i in range(8):
        a(f"ds_read_b64 v[{96+2*i}:{97+2*i}], v19 offset:{i*512}")
    a("s_waitcnt lgkmcnt(0)")
    for (x, y) in ((0, 1), (2, 3), (4, 5), (6, 7), (0, 2), (4, 6), (0, 4)):
        a(f"v_add_f32 v{96+2*x}, v{96+2*x}, v{96+2*y}\nv_add_f32 v{97+2*x}, v{97+2*x}, v{97+2*y}")
    rnd2(96, 97, 12)
    a("v_mul_f32 v96, v76, v96\nv_mul_f32 v97, v77, v97")
    rnd2(96, 97, 12)
    a("v_add_f32 v96, v80, v96\nv_add_f32 v97, v81, v97")
    rnd2(96, 97, 12)
    a(f"""
    v_mul_f32 v98, v96, v78
    v_mul_f32 v99, v97, v79
    v_cvt_pk_bf16_f32 v100, v98, v99
    v_add_f32 v12, v96, v97
    v_mov_b32_dpp v101, v100 row_ror:12 row_mask:0xf bank_mask:0xf
    v_mov_b32_dpp v102, v100 row_ror:8 row_mask:0xf bank_mask:0xf
    v_mov_b32_dpp v103, v100 row_ror:4 row_mask:0xf bank_mask:0xf
    v_mfma_f32_16x16x32_bf16 v[24:27], v[100:103], v[64:67], 0
    v_mfma_f32_16x16x32_bf16 v[28:31], v[100:103], v[68:71], 0
    """)
    ror(12, 4); ror(12, 8); xrow_sum(12, 13)
    pack4(24, 24, 25, 26, 27)
    pack4(28, 28, 29, 30, 31)
    EX(0xffff, 0)
    a(f"buffer_store_dwordx4 v[24:27], v8, {sWS}, s10 offen sc1")
    a(f"buffer_store_dwordx4 v[28:31], v8, {sWS}, s10 offen offset:256 sc1")
    EXALL()
    a(f"""
    v_mul_f32 v12, 0x3d000000, v12       ; mean32
    v_sub_f32 v14, v96, v12
    v_sub_f32 v15, v97, v12
    v_mul_f32 v13, v14, v14
    v_fmac_f32 v13, v15, v15
    """)
    ror(13, 4); ror(13, 8); xrow_sum(13, 14)
    a(f"v_mov_b32 v14, 0\nv_mov_b32 v15, {TAG}")
    EX(0xf, 0)
    a(f"buffer_store_dwordx4 v[12:15], v8, {sWS}, s11 offen sc1")
    EXALL()
    TS(14)
    a(f"s_cmp_ge_u32 s2, {S2_0}\ns_cbranch_scc1 L_s2")
    a(f"s_cmp_ge_u32 s2, {NRED}\ns_cbranch_scc1 L_end")
    a("s_cmp_eq_u32 s3, 0\ns_cbranch_scc0 L_end")

    a(f"""
    v_add_u32 v19, {L_X1}, v18
    ds_write_b64 v19, v[96:97]
    v_and_b32 v6, 7, v1            ; n8
    v_bfe_u32 v7, v1, 3, 2         ; b
    v_lshlrev_b32 v9, 7, v7
    v_lshl_add_u32 v9, v6, 2, v9
    s_lshl_b32 s8, s99, 5
    v_add_u32 v9, s8, v9           ; b*128 + (8 fsl + n8)*4
    v_add_u32 v10, {L_X1}, v9
    v_add_u32 v9, {L_CC + 1536}, v9
    s_waitcnt lgkmcnt(0)
    ds_read_b32 v40, v10           ; x1
    ds_read_b32 v41, v9            ; gb
    s_lshl_b32 s9, s100, 2
    s_add_u32 s9, s9, s99          ; r
    s_mul_i32 s11, s9, {96*128}
    s_add_u32 s11, s11, {EM}
    v_mul_u32_u24 v9, 1280, v7
    v_lshl_add_u32 v9, v6, 1, v9
    s_lshl_b32 s13, s9, 4
    v_cmp_eq_u32 s[14:15], 1, v7
    v_cmp_eq_u32 s[16:17], 2, v7
    v_cmp_eq_u32 s[18:19], 3, v7
    """)
    srd(56, 38, 5120)
    a(f"""
    {'s_sleep %d' % pre[3] if pre[3] else ''}
    L_e_poll:
    s_mov_b32 s12, s11
    """)
    NE = 12
    for i in range(NE):
        a(f"buffer_load_dwordx4 v[{64+4*i}:{67+4*i}], v8, {sWS}, s12 offen offset:{(i%4)*1024} sc1")
        if i % 4 == 3 and i < NE - 1: a("s_add_u32 s12, s12, 4096")
    a("s_waitcnt vmcnt(0)")
    chk([67 + 4 * i for i in range(NE)], 11, "L_e_poll", sleep=intv[3])
    TS(11)
    for i in range(NE): unpack4(64 + 4 * i)
    n = NE
    while n > 1:
        h = n // 2
        for i in range(h):
            for v in range(4):
                a(f"v_add_f32 v{64+4*i+v}, v{64+4*i+v}, v{64+4*(n-1-i)+v}")
        n = n - h
    for v in range(4): ror(64 + v, 8)
    xsum4(64, 68)
    a(f"""
    v_cndmask_b32 v13, v64, v65, s[14:15]
    v_cndmask_b32 v13, v13, v66, s[16:17]
    v_cndmask_b32 v13, v13, v67, s[18:19]
    """)
    rnd1(13)
    a("s_waitcnt lgkmcnt(0)\nv_mul_f32 v13, v41, v13")
    rnd1(13)
    a(f"""
    v_add_f32 v13, v40, v13
    v_cvt_pk_bf16_f32 v13, v13, v13
    """)
    EX(0xffffffff, 0)
    a(f"buffer_store_short v13, v9, {sA}, s13 offen")
    EXALL()
    TS(12)
    a(f"""
    s_cmp_eq_u32 s2, 0
    s_cbranch_scc0 L_end
    v_mov_b32 v8, {TAG}
    """)
    EX(1, 0)
    a(f"buffer_store_dword v8, v1, {sWS}, 0 offen sc1")
    EXALL()
    a("s_branch L_end")

    a("L_s2:")
    a(f"""
    s_sub_u32 s8, s2, {S2_0}         ; fs
    s_mul_i32 s9, s8, 20
    v_lshl_add_u32 v17, v5, 2, v6    ; 4g + r
    v_mul_u32_u24 v17, 1280, v17
    v_lshl_add_u32 v17, v7, 3, v17
    s_mul_i32 s11, s3, 160
    s_add_u32 s11, s11, {L_WD}
    v_add_u32 v17, s11, v17
    ds_read_b64_tr_b16 v[84:85], v17
    ds_read_b64_tr_b16 v[86:87], v17 offset:32
    ds_read_b64_tr_b16 v[88:89], v17 offset:64
    ds_read_b64_tr_b16 v[90:91], v17 offset:96
    ds_read_b64_tr_b16 v[92:93], v17 offset:128
    v_lshlrev_b32 v12, 2, v1
    v_add_u32 v12, {L_CR}, v12
    v_and_b32 v18, 3, v1
    v_lshlrev_b32 v18, 3, v18
    v_add_u32 v18, {L_SS}, v18
    v_lshrrev_b32 v13, 3, v4
    v_mul_u32_u24 v13, {96*128}, v13
    v_and_b32 v14, 7, v4
    v_lshl_add_u32 v13, v14, 4, v13
    s_mul_i32 s15, s3, {10*96*128}
    s_lshl_b32 s13, s8, 7
    s_add_u32 s15, s15, s13
    s_add_u32 s15, s15, {EM}
    s_cmp_ge_u32 s3, 6
    s_cbranch_scc1 L_s2_static
    s_cmp_eq_u32 s3, 5
    s_cbranch_scc1 L_s2_stats
    s_lshl_b32 s10, s3, 2
    s_add_u32 s10, s10, s9
    s_lshl_b32 s10, s10, 9
    s_add_u32 s10, s10, {CM}
    s_lshl_b32 s11, s3, 9
    s_add_u32 s11, s11, {L_CR}
    v_add_u32 v9, s11, v8
    {'s_sleep %d' % pre[2] if pre[2] else ''}
    L_s2_poll:
    buffer_load_dwordx4 v[96:99], v8, {sWS}, s10 offen sc1
    buffer_load_dwordx4 v[100:103], v8, {sWS}, s10 offen offset:1024 sc1
    s_waitcnt vmcnt(0)
    """)
    chk([99, 103], 10, "L_s2_poll", sleep=intv[2])
    TS(11)
    unpack4(96); unpack4(100)
    for v in range(4): a(f"v_add_f32 v{96+v}, v{96+v}, v{100+v}")
    for v in range(4): a(f"v_mov_b32 v{100+v}, v{96+v}")
    for v in range(4): a(f"v_permlane32_swap_b32 v{96+v}, v{100+v}")
    for v in range(4): a(f"v_add_f32 v{96+v}, v{96+v}, v{100+v}")
    EX(0xffffffff, 0)
    a("ds_write_b128 v9, v[96:99]")
    EXALL()
    a("s_branch L_s2_b4")
    a("L_s2_static:")
    if nocms: a("s_branch L_s2_b4")
    a(f"""
    s_sub_u32 s10, s3, 6
    s_mul_i32 s11, s10, 10
    s_add_u32 s11, s11, s9
    s_lshl_b32 s11, s11, 10
    s_add_u32 s11, s11, {CMS}
    s_lshl_b32 s10, s10, 10
    s_add_u32 s10, s10, {L_CR + 2560}
    v_add_u32 v9, s10, v8
    L_s2_spoll:
    s_mov_b32 s12, s11
    """)
    for i in range(10):
        a(f"buffer_load_dwordx4 v[{96+4*i}:{99+4*i}], v8, {sWS}, s12 offen offset:{(i%4)*1024} sc1")
        if i % 4 == 3: a("s_add_u32 s12, s12, 4096")
    a("s_waitcnt vmcnt(0)")
    chk([99 + 4 * i for i in range(10)], 10, "L_s2_spoll", sleep=1)
    TS(11)
    for i in range(10): unpack4(96 + 4 * i)
    for i in range(1, 10):
        for v in range(4): a(f"v_add_f32 v{96+v}, v{96+v}, v{96+4*i+v}")
    a("ds_write_b128 v9, v[96:99]")
    a("s_branch L_s2_b4")
    a("L_s2_stats:")
    a(f"""
    s_lshl_b32 s11, s9, 6
    s_add_u32 s11, s11, {CST}
    v_and_b32 v9, 15, v1
    v_lshlrev_b32 v9, 4, v9
    s_mov_b32 s16, 0xffff0000
    s_mov_b32 s17, -1
    {'s_sleep %d' % pre[2] if pre[2] else ''}
    L_s2_tpoll:
    buffer_load_dwordx4 v[96:99], v8, {sWS}, s11 offen sc1
    buffer_load_dwordx4 v[100:103], v9, {sWS}, s11 offen offset:1024 sc1
    s_waitcnt vmcnt(0)
    """)
    chk([99, 103], 10, "L_s2_tpoll", sleep=intv[2])
    TS(11)
    a(f"""
    v_cndmask_b32 v14, v100, 0, s[16:17]
    v_add_f32 v14, v14, v96
    """)
    ror(14, 4); ror(14, 8); xrow_sum(14, 15)
    a(f"""
    v_mul_f32 v14, 0x3d4ccccd, v14      ; /20 -> mean
    v_sub_f32 v96, v96, v14
    v_sub_f32 v100, v100, v14
    v_mul_f32 v96, v96, v96
    v_mul_f32 v100, v100, v100
    v_fmac_f32 v97, 0x42000000, v96
    v_fmac_f32 v101, 0x42000000, v100
    v_cndmask_b32 v15, v101, 0, s[16:17]
    v_add_f32 v15, v15, v97
    """)
    ror(15, 4); ror(15, 8); xrow_sum(15, 19)
    a(f"v_mul_f32 v15, {hex(0x3ACCCCCD)}, v15")
    rnd2(14, 15, 19)
    a(f"v_add_f32 v15, {hex(0x3727C5AC)}, v15")
    rnd1(15)
    a("v_sqrt_f32 v15, v15")
    rnd1(15)
    a("v_rcp_f32 v15, v15")
    a("s_nop 0\nds_write_b64 v18, v[14:15]")
    a("L_s2_b4:")
    a("s_waitcnt lgkmcnt(0)\ns_barrier")
    for i in range(5):
        a(f"ds_read_b32 v{24+i}, v12 offset:{i*512}")
        a(f"ds_read_b32 v{32+i}, v12 offset:{i*512+256}")
    rd = [f"ds_read_b32 v{40+4*j+ty}, v12 offset:{2560 + j*1024 + ty*256}" for j in range(2) for ty in range(4)] + ["ds_read_b64 v[14:15], v18"]
    for x in rd[:5]: a(x)
    a("s_waitcnt lgkmcnt(5)")
    for x in rd[5:]: a(x)
    a("""
    v_add_f32 v24, v24, v25
    v_add_f32 v26, v26, v27
    v_add_f32 v32, v32, v33
    v_add_f32 v34, v34, v35
    v_add_f32 v24, v24, v26
    v_add_f32 v32, v32, v34
    v_add_f32 v24, v24, v28
    v_add_f32 v32, v32, v36
    s_waitcnt lgkmcnt(0)
    v_add_f32 v40, v40, v44
    v_add_f32 v41, v41, v45
    v_add_f32 v42, v42, v46
    v_add_f32 v43, v43, v47
    v_fma_f32 v24, -v14, v40, v24
    v_fma_f32 v32, -v14, v42, v32
    v_fma_f32 v24, v24, v15, v41
    v_fma_f32 v32, v32, v15, v43
    """)
    rnd2(24, 32, 19)
    a(f"""
    v_cmp_lt_f32 vcc, 0, v24
    v_cndmask_b32 v25, 0, 1.0, vcc
    v_mul_f32 v24, v24, v25
    v_mul_f32 v24, v24, v32
    v_mov_b32_dpp v25, v24 row_ror:12 row_mask:0xf bank_mask:0xf
    v_mov_b32_dpp v26, v24 row_ror:8 row_mask:0xf bank_mask:0xf
    v_mov_b32_dpp v27, v24 row_ror:4 row_mask:0xf bank_mask:0xf
    v_cvt_pk_bf16_f32 v28, v24, v25
    v_cvt_pk_bf16_f32 v29, v26, v27
    s_waitcnt lgkmcnt(0)
    """)
    for i in range(5):
        a(f"v_mfma_f32_16x16x16_bf16 v[{32+4*i}:{35+4*i}], v[28:29], v[{84+2*i}:{85+2*i}], 0")
    EX(0xffff, 0)
    for i in range(5):
        pack4(32 + 4 * i, 32 + 4 * i, 33 + 4 * i, 34 + 4 * i, 35 + 4 * i)
        a(f"buffer_store_dwordx4 v[{32+4*i}:{35+4*i}], v13, {sWS}, s15 offen sc1")
        if i < 4: a(f"s_add_u32 s15, s15, {2*96*128}")
    EXALL()
    TS(12)

    a("L_end:")
    if ts:
        TS(15)
        a(f"""
        s_lshl_b32 s8, s2, 3
        s_add_u32 s8, s8, s3
        s_lshl_b32 s8, s8, 6
        s_add_u32 s8, s8, {TSOFF}
        v_lshlrev_b32 v6, 2, v1
        s_mov_b64 exec, 0xffff
        buffer_store_dword v63, v6, {sTS}, s8 offen
        """)
    a("L_exit:\ns_endpgm")
    a.footer(256, 102)
    nn = a.write(out)
    return nn

if __name__ == "__main__":
    gen("k5.s", NV1=6, D=5, D1=5)
    gen("e_a.s", NV1=6, D=5, D1=5, ts=True)
    gen("e_b.s", NV1=6, D=5, D1=4, N1=24, ts=True)
    gen("e_c.s", NV1=5, D=5, D1=5, ts=True)
    gen("e_d.s", NV1=6, D=6, D1=6, ts=True)
    gen("e_e.s", NV1=6, D=6, D1=4, N1=30, ts=True)
```

```python
import sys, copy
from asmlib import *

EPOCH = 0x0
FLAG1 = 0x1000
MODP = 0x10000
QP   = 0x50000
OPX  = 0x140000
AM   = 0x188000
CM   = 0x1C4000
CST  = 0x2B4000
CMS  = 0x2E0000
EM   = 0x4C0000
F1 = 0x1000
F2 = 0x5B0000
FO = 0x5B8000
FE = 0x5C0000
PG = 0x5CC000
FA = 0x5D0000
WSEND = 0x5E0000
TSOFF = 0x2000000
L_WM = 0
L_WQ = 20480
L_WO = 0
L_W1 = 32768
L_WD = 53248
L_HK = 73728
L_HV = 98304
L_RED = 122880
L_WR = 135168
L_AR = 143360
L_CR = 147456
L_MISC = 155648
L_Q = L_MISC
L_MLW = L_MISC + 512
L_SS = L_MISC + 640
L_CNT = L_MISC + 704
L_HB = L_MISC + 1024
L_CC = L_MISC + 2048
L_SA = L_MISC + 4096
L_X1 = L_MISC + 4608
L_WOB = 73728
L_WRB = 106496
L_DUMMY = L_MISC + 5120
LDS_TOTAL = 163840
LOG2E = 0x3FB8AA3B
SCALE = 0x3D93CD3A
S2_0 = 144
NRED = 80
SPIN = 100000
TAG = "s85"

def gen(out, NV1=2, D=5, D1=3, N1=24, NWQ0=0, NL=2, DL=4, N2=60, abl=(), dly=(0,0), rot=1, prio=1, TKT=7, early=0, late=1, S=0, warm=0, noprefix=False, ts=False, comments=(), nocms=False, hpre=(0,), pre=(0,0,0,8), intv=(0,0,0,0)):
    a = Asm()
    a.header(256, 512, LDS_TOTAL, comments)
    sK, sV, sWS, sA, sB, sC, sTS = "s[44:47]", "s[48:51]", "s[52:55]", "s[56:59]", "s[60:63]", "s[64:67]", "s[68:71]"
    mODD, mNHI, mQ1, mQ2, mQ3, mRED, mHI = "s[72:73]", "s[74:75]", "s[76:77]", "s[78:79]", "s[80:81]", "s[82:83]", "s[92:93]"
    P0, P1, P2, U0, U1 = "s94", "s95", "s96", "s97", "s98"
    def srd(base, ptr, size):
        a(f"s_mov_b32 s{base}, s{ptr}\ns_mov_b32 s{base+1}, s{ptr+1}\ns_mov_b32 s{base+2}, {size}\ns_mov_b32 s{base+3}, 0x20000")
    def TS2(k):
        if ts == 2:
            a(f"s_memrealtime s[86:87]\ns_waitcnt lgkmcnt(0)\nv_writelane_b32 v63, s86, {k}")
    def TS(k):
        if ts == 2 and 8 <= k <= 14: return
        if ts == 4: return
        if ts:
            a(f"s_memrealtime s[86:87]\ns_waitcnt lgkmcnt(0)\nv_writelane_b32 v63, s86, {k}")
    def xrow_sum(r, t, op="v_add_f32"):
        a(f"v_mov_b32 v{t}, v{r}\nv_permlane16_swap_b32 v{r}, v{t}\n{op} v{r}, v{r}, v{t}")
        a(f"v_mov_b32 v{t}, v{r}\nv_permlane32_swap_b32 v{r}, v{t}\n{op} v{r}, v{r}, v{t}")
    def ror(r, n, op="v_add_f32"):
        a(f"{op}_dpp v{r}, v{r}, v{r} row_ror:{n} row_mask:0xf bank_mask:0xf")
    def rnd2(x, y, p):
        a(f"v_cvt_pk_bf16_f32 v{p}, v{x}, v{y}\nv_lshlrev_b32 v{x}, 16, v{p}\nv_and_b32 v{y}, 0xffff0000, v{p}")
    def rnd1(x):
        a(f"v_cvt_pk_bf16_f32 v{x}, v{x}, v{x}\nv_and_b32 v{x}, 0xffff0000, v{x}")
    def chk(tagregs, t, retry, sleep=0):
        regs = list(tagregs)
        a(f"v_xor_b32 v{t}, {TAG}, v{regs[0]}")
        for r in regs[1:]:
            a(f"v_xor_b32 v{t+1}, {TAG}, v{r}\nv_or_b32 v{t}, v{t}, v{t+1}")
        lab = a.label("L_ok")
        slot = {"L_h_poll1": 1, "L_h_poll2": 2, "L_h_poll3": 3, "L_wo_poll": 4, "L_s1_poll": 5, "L_s2_poll": 6, "L_s2_spoll": 7, "L_s2_tpoll": 8, "L_e_poll": 9}[retry]
        cnt = f"v_readlane_b32 s86, v63, {slot}\ns_nop 3\ns_add_u32 s86, s86, 1\ns_nop 3\nv_writelane_b32 v63, s86, {slot}" if ts == 4 else ""
        a(f"""
        v_cmp_ne_u32 vcc, 0, v{t}
        s_cbranch_vccz {lab}
        {cnt}
        {'s_sleep %d' % sleep if sleep else ''}
        s_sub_u32 s84, s84, 1
        s_cmp_lg_u32 s84, 0
        s_cbranch_scc1 {retry}
        {lab}:
        """)
    def fpoll(name, off_sreg, width, n, base, sleep=0):
        a(f"""
        s_add_u32 s14, s42, {off_sreg}
        s_addc_u32 s15, s43, 0
        {name}:
        s_load_dwordx{width} s[{base}:{base+width-1}], s[14:15], 0 glc
        s_waitcnt lgkmcnt(0)
        s_and_b64 vcc, s[{base}:{base+1}], s[{base+2}:{base+3}]
        s_or_b64 s[{base}:{base+1}], s[{base}:{base+1}], s[{base+2}:{base+3}]
        """)
        assert n % 2 == 0
        for i in range(4, n, 2):
            a(f"s_and_b64 vcc, vcc, s[{base+i}:{base+i+1}]\ns_or_b64 s[{base}:{base+1}], s[{base}:{base+1}], s[{base+i}:{base+i+1}]")
        a(f"""
        s_and_b32 vcc_lo, vcc_lo, vcc_hi
        s_or_b32 s{base}, s{base}, s{base+1}
        s_xor_b32 vcc_lo, vcc_lo, {TAG}
        s_xor_b32 s{base}, s{base}, {TAG}
        s_or_b32 s{base}, s{base}, vcc_lo
        s_cmp_eq_u32 s{base}, 0
        s_cbranch_scc1 {name}_ok
        {'s_sleep %d' % sleep if sleep else ''}
        s_sub_u32 s84, s84, 1
        s_cmp_lg_u32 s84, 0
        s_cbranch_scc1 {name}
        {name}_ok:
        """)
    def pack4(d, v0, v1, v2, v3):
        a(f"v_perm_b32 v{d}, v{v0}, v{v3}, {P0}")
        a(f"v_perm_b32 v{d+1}, v{v1}, v{v3}, {P1}")
        a(f"v_perm_b32 v{d+2}, v{v2}, v{v3}, {P2}")
        a(f"v_mov_b32 v{d+3}, {TAG}")
    def unpack4(d):
        a(f"v_perm_b32 v{d+3}, v{d}, v{d+1}, {U0}")
        a(f"v_perm_b32 v{d+3}, v{d+3}, v{d+2}, {U1}")
    def quad_gather(d, src):
        a(f"v_mov_b32_dpp v{d+1}, v{src} quad_perm:[1,1,1,1] row_mask:0xf bank_mask:0xf")
        a(f"v_mov_b32_dpp v{d+2}, v{src} quad_perm:[2,2,2,2] row_mask:0xf bank_mask:0xf")
        a(f"v_mov_b32_dpp v{d+3}, v{src} quad_perm:[3,3,3,3] row_mask:0xf bank_mask:0xf")
        pack4(d, src, d + 1, d + 2, d + 3)
    def sel_q4(dsts, sets):
        for v in range(len(dsts)):
            a(f"v_cndmask_b32 v{dsts[v]}, v{sets[0][v]}, v{sets[1][v]}, {mQ1}")
            a(f"v_cndmask_b32 v{dsts[v]}, v{dsts[v]}, v{sets[2][v]}, {mQ2}")
            a(f"v_cndmask_b32 v{dsts[v]}, v{dsts[v]}, v{sets[3][v]}, {mQ3}")
    def xsum4(base, tb):
        for v in range(4): a(f"v_mov_b32 v{tb+v}, v{base+v}")
        for v in range(4): a(f"v_permlane16_swap_b32 v{base+v}, v{tb+v}")
        for v in range(4): a(f"v_add_f32 v{base+v}, v{base+v}, v{tb+v}")
        for v in range(4): a(f"v_mov_b32 v{tb+v}, v{base+v}")
        for v in range(4): a(f"v_permlane32_swap_b32 v{base+v}, v{tb+v}")
        for v in range(4): a(f"v_add_f32 v{base+v}, v{base+v}, v{tb+v}")
    def EX(lo, hi=None):
        hi = lo if hi is None else hi
        a(f"s_mov_b32 exec_lo, {hex(lo)}\ns_mov_b32 exec_hi, {hex(hi)}")
    def EXALL(): a("s_mov_b64 exec, -1")

    a(f"""
    s_cmp_ge_u32 s2, 256
    s_cbranch_scc1 L_exit
    s_load_dwordx16 s[16:31], s[0:1], 0
    s_load_dwordx8 s[32:39], s[0:1], 64
    s_load_dwordx4 s[40:43], s[0:1], 96
    v_and_b32 v1, 63, v0
    v_lshrrev_b32 v6, 6, v0
    v_readfirstlane_b32 s3, v6
    v_and_b32 v4, 15, v1
    v_lshrrev_b32 v5, 4, v1
    s_and_b32 s8, s2, 7
    s_lshr_b32 s9, s2, 3
    s_and_b32 s10, s9, 3
    s_lshl_b32 s4, s8, 2
    s_add_u32 s4, s4, s10          ; head
    s_lshr_b32 s5, s9, 2
    s_and_b32 s5, s5, 3            ; b
    s_lshr_b32 s6, s9, 4           ; split
    s_lshl_b32 s7, s5, 5
    s_add_u32 s7, s7, s4
    s_lshl_b32 s7, s7, 12
    s_add_u32 s7, s7, 3072
    s_lshl_b32 s10, s6, 9
    s_add_u32 s7, s7, s10
    s_lshl_b32 s10, s3, {3 if rot else 6}
    s_add_u32 s7, s7, s10
    s_mul_i32 s7, s7, 384
    s_mul_i32 s101, s8, 30
    s_add_u32 s101, s101, s9
    s_mul_i32 s88, s101, 1093
    s_lshr_b32 s88, s88, 16        ; ks = u/60
    s_mul_i32 s10, s88, 60
    s_sub_u32 s89, s101, s10       ; cbk
    s_mul_i32 s90, s101, 1366
    s_lshr_b32 s90, s90, 16        ; kq = u/48
    s_mul_i32 s10, s90, 48
    s_sub_u32 s91, s101, s10       ; qb
    s_mul_i32 s99, s2, 3277
    s_lshr_b32 s99, s99, 16        ; fsl = u/20
    s_mul_i32 s10, s99, 20
    s_sub_u32 s100, s2, s10        ; ksl
    v_lshrrev_b32 v6, 1, v4
    v_mul_u32_u24 v6, 384, v6
    v_and_b32 v7, 1, v4
    v_lshl_add_u32 v7, v7, 2, v5
    v_lshl_add_u32 v2, v7, 4, v6
    v_lshrrev_b32 v8, 3, v1
    v_mul_u32_u24 v6, 384, v8
    v_and_b32 v7, 7, v1
    v_lshl_add_u32 v3, v7, 4, v6
    v_mul_u32_u24 v8, 7680, v8
    v_lshl_add_u32 v8, v7, 4, v8
    v_mul_u32_u24 v9, 12288, v5
    v_lshl_add_u32 v61, v4, 4, v9
    s_mov_b32 s72, 0xaaaaaaaa
    s_mov_b32 s73, 0xaaaaaaaa
    s_mov_b32 s74, 0xff00ff00
    s_mov_b32 s75, 0xff00ff00
    s_mov_b32 s76, 0xffff0000
    s_mov_b32 s77, 0
    s_mov_b32 s78, 0
    s_mov_b32 s79, 0x0000ffff
    s_mov_b32 s80, 0
    s_mov_b32 s81, 0xffff0000
    s_mov_b32 s82, 0x00ff00ff
    s_mov_b32 s83, 0xff00ff00
    s_mov_b32 s92, 0
    s_mov_b32 s93, -1
    s_mov_b32 s84, {SPIN}
    s_mov_b32 {P0}, 0x07060503
    s_mov_b32 {P1}, 0x07060502
    s_mov_b32 {P2}, 0x07060501
    s_mov_b32 {U0}, 0x04000c0c
    s_mov_b32 {U1}, 0x0706000c
    s_mul_i32 s11, s88, 160
    s_lshl_b32 s12, s3, 3
    s_add_u32 s11, s11, s12
    s_mul_i32 s11, s11, 7680
    s_lshl_b32 s12, s89, 7
    s_add_u32 s11, s11, s12
    s_lshl_b32 s12, s3, 10
    s_lshl_b32 s13, s90, 7
    s_lshl_b32 s14, s3, 4
    s_add_u32 s13, s13, s14
    s_mul_i32 s13, s13, 12288
    s_lshl_b32 s14, s91, 8
    s_add_u32 s13, s13, s14
    s_lshl_b32 s14, s3, 12
    s_add_u32 s14, s14, {L_WQ}
    s_waitcnt lgkmcnt(0)
    s_load_dword {TAG}, s[42:43], {EPOCH}
    """)
    srd(56, 36, 4915200)
    srd(60, 22, 7864320)
    srd(52, 42, WSEND)
    srd(44, 18, 201326592)
    srd(48, 20, 201326592)
    if ts:
        a("v_mov_b32 v63, 0")
    TS(0)
    a("s_cmp_eq_u32 s3, 0\ns_cbranch_scc0 L_p_dma")
    srd(64, 34, 5120)
    a(f"""
    v_mov_b32 v10, {L_CNT}
    v_mov_b32 v12, 0
    v_mov_b32 v13, 0
    ds_write_b64 v10, v[12:13]
    ds_write_b64 v10, v[12:13] offset:8
    ds_write_b64 v10, v[12:13] offset:16
    ds_write_b64 v10, v[12:13] offset:24
    v_and_b32 v6, 3, v4
    v_mul_u32_u24 v11, 1280, v6
    v_lshl_add_u32 v11, v5, 4, v11
    s_mul_i32 s10, s88, 320
    """)
    for t in range(5):
        a(f"buffer_load_dwordx4 v[{160+4*t}:{163+4*t}], v11, {sC}, s10 offen offset:{t*64}")
    srd(64, 16, 5120)
    a(f"""
    v_lshrrev_b32 v7, 2, v4        ; tq
    v_mul_u32_u24 v16, 320, v7
    v_add_u32 v16, v16, v11        ; b*1280 + tq*320 + g*16
    v_mul_u32_u24 v17, 1280, v6
    v_lshl_add_u32 v17, v7, 5, v17
    v_lshl_add_u32 v17, v5, 3, v17 ; b*1280 + tq*32 + g*8
    s_lshl_b32 s10, s90, 8
    """)
    for i in range(5):
        a(f"buffer_load_dwordx4 v[{180+4*i}:{183+4*i}], v16, {sC}, 0 offen offset:{i*64}")
    a(f"buffer_load_dwordx2 v[200:201], v17, {sC}, s10 offen")
    a(f"buffer_load_dwordx2 v[202:203], v17, {sC}, s10 offen offset:128")
    a(f"""
    v_mul_u32_u24 v16, 1280, v5
    v_lshl_add_u32 v16, v4, 2, v16
    s_lshl_b32 s10, s100, 6
    buffer_load_dword v52, v16, {sC}, s10 offen
    """)
    a("L_p_dma:")
    a("s_cmp_ge_u32 s2, 240\ns_cbranch_scc1 L_p_nodma")
    for j in range(3):
        if j == 2: a("s_cmp_ge_u32 s3, 4\ns_cbranch_scc1 L_p_wq")
        a(f"s_add_u32 m0, s12, {L_WM + j*8192}")
        a(f"buffer_load_dwordx4 v8, {sA}, s11 offen nt lds")
        if j < 2: a(f"s_add_u32 s11, s11, {64*7680}")
    a("L_p_wq:")
    def wq_dma(i):
        a(f"s_add_u32 m0, s14, {i*1024}")
        a(f"buffer_load_dwordx4 v61, {sB}, s13 offen nt lds")
        a(f"s_add_u32 s13, s13, {4*12288}")
    for i in range(NWQ0): wq_dma(i)
    a("s_branch L_p_dmadone")
    a("L_p_nodma:")
    a("s_mov_b32 s13, 0x10000000")
    a("L_p_dmadone:")
    a("s_cmp_eq_u32 s3, 0\ns_cbranch_scc1 L_helper")

    KB, VB = 64, 160
    PS = 56
    class Stream:
        def __init__(self, D):
            self.D = D; self.ops = []; self.last_pair = None; self.sigs = []; self.DL = 0; self.pace = False; self.pend = False; self.rolex = 0; self.tk = False
        def thr(self):
            if self.DL and len(self.ops) >= self.DL:
                lab = a.label("L_sk")
                a(f"s_cbranch_vccnz {lab}\ns_waitcnt vmcnt({self.DL-1})\n{lab}:")
            if self.D and len(self.ops) >= self.D:
                a(f"s_waitcnt vmcnt({self.D-1})")
                for (tag, off) in list(self.sigs):
                    idx = max(i for i, o in enumerate(self.ops) if o == tag)
                    if len(self.ops) - 1 - idx >= self.D - 1:
                        EX(1, 0)
                        a(f"ds_add_u32 v10, v11 offset:{off}")
                        EXALL()
                        self.sigs.remove((tag, off))
        def load(self, which, T, s):
            base = KB if which == 'k' else VB
            sr = sK if which == 'k' else sV
            vo = 2 if which == 'k' else 3
            pair = T // 2
            if rot:
                if s == 0:
                    a(f"s_add_u32 s8, s13, {T}\ns_and_b32 s8, s8, 7\ns_mul_i32 s8, s8, 24576\ns_add_u32 s8, s8, s7")
                    if prio and which == 'v' and T >= 5: a(f"s_setprio {7 - T}")
            elif pair != self.last_pair:
                a(f"s_add_u32 s8, s7, {pair*6144}"); self.last_pair = pair
            cnt = (0 if which == 'k' else 24) + T * 3 + s
            if self.pace and s == 2 and cnt + 1 - S > 0 and cnt < 47:
                a(f"s_load_dwordx8 s[{PS}:{PS+7}], s[34:35], 0 glc")
                self.pend = True
            self.thr()
            r = base + T * 12 + s * 4
            a(f"buffer_load_dwordx4 v[{r}:{r+3}], v{vo}, {sr}, s8 offen offset:{(0 if rot else (T%2)*3072) + s*128} nt")
            self.ops.append((which, T))
            if self.pace:
                lab = a.label("L_pb")
                a(f"s_cmp_eq_u32 s3, 7\ns_cbranch_scc0 {lab}\nv_add_u32 v61, 1, v61")
                EX(1, 0)
                a(f"buffer_store_dword v61, v1, {sWS}, s36 offen sc1")
                EXALL()
                a(f"{lab}:")
        def tile(self, which, T):
            if self.DL:
                lab = a.label("L_fc")
                a(f"""
                s_cbranch_vccnz {lab}
                ds_read_b32 v12, v10 offset:8
                s_waitcnt lgkmcnt(0)
                v_cmp_ne_u32 vcc, 0, v12
                {lab}:
                """)
            if self.pace and self.pend:
                cnt = (0 if which == 'k' else 24) + T * 3
                need = cnt - S
                l1 = a.label("L_pc"); l2 = a.label("L_pk")
                a(f"{l1}:\ns_waitcnt lgkmcnt(0)\ns_add_u32 s9, s37, {need}")
                a(f"s_sub_u32 s{PS}, s{PS}, s9")
                for i in range(1, 8):
                    a(f"s_sub_u32 s{PS+i}, s{PS+i}, s9\ns_max_u32 s{PS}, s{PS}, s{PS+i}")
                a(f"""
                s_cmp_le_u32 s{PS}, {255 - need}
                s_cbranch_scc1 {l2}
                s_load_dwordx8 s[{PS}:{PS+7}], s[34:35], 0 glc
                s_sub_u32 s84, s84, 1
                s_cmp_lg_u32 s84, 0
                s_cbranch_scc1 {l1}
                s_waitcnt lgkmcnt(0)
                {l2}:
                """)
                self.pend = False
            if self.tk and which == 'v' and T == TKT:
                lab = a.label("L_tk")
                a(f"s_cmp_eq_u32 s3, 7\ns_cbranch_scc0 {lab}\ns_mov_b32 s36, 1\ns_atomic_add s36, s[40:41], 0 glc\n{lab}:")
            for s in range(3): self.load(which, T, s)
            if self.tk and which == 'v' and T == TKT:
                lab = a.label("L_tk")
                a(f"""
                s_cmp_eq_u32 s3, 7
                s_cbranch_scc0 {lab}
                s_waitcnt lgkmcnt(0)
                s_add_u32 s36, s36, 1
                v_mov_b32 v6, {L_CNT}
                v_mov_b32 v7, s36
                ds_write_b32 v6, v7 offset:24
                {lab}:
                """)
        def wait(self, tag):
            if tag not in self.ops: return
            idx = max(i for i, o in enumerate(self.ops) if o == tag)
            n = len(self.ops) - 1 - idx
            if self.rolex and n < 24:
                l1 = a.label("L_w"); l2 = a.label("L_w")
                a(f"s_cmp_ge_u32 s3, 4\ns_cbranch_scc1 {l1}\ns_waitcnt vmcnt({n})\ns_branch {l2}\n{l1}:\ns_waitcnt vmcnt({n + self.rolex})\n{l2}:")
            else:
                a(f"s_waitcnt vmcnt({min(n, 63)})")
        def other(self, tag):
            self.thr()
            self.ops.append(tag)

    def setup2():
        a(f"""
        s_cmp_gt_u32 s3, 4
        s_cselect_b32 s9, 2, 1
        s_sub_u32 s9, s3, s9
        s_lshl_b32 s9, s9, 2           ; p0 = 4 zi
        s_mul_i32 s10, s3, {8*384 if rot else 64*384}
        s_sub_u32 s10, s7, s10
        """)
        for j in range(4):
            a(f"""
            s_add_u32 s11, s9, {j}
            s_mul_i32 s12, s11, 171
            s_lshr_b32 s12, s12, 9         ; T
            s_mul_i32 s26, s12, {(24576 if rot else 3072) - 384}
            s_lshl_b32 s27, s11, 7         ; p*128
            s_add_u32 s26, s26, s27
            s_add_u32 s26, s26, s10
            s_lshl_b32 s27, s11, 10
            s_add_u32 s15, s27, {L_HK}
            s_add_u32 s27, s27, {L_HV}
            s_cmp_eq_u32 s3, 4
            s_cselect_b32 s{16+j}, 0x10000000, s26
            s_cselect_b32 s{20+j}, {L_DUMMY}, s15
            s_cselect_b32 s{64+j}, {L_DUMMY}, s27
            """)
        a(f"""
        s_mul_i32 s9, s2, 6554
        s_lshr_b32 s9, s9, 16          ; ob = u/10
        s_mul_i32 s10, s9, 10
        s_sub_u32 s10, s2, s10         ; oc
        s_lshl_b32 s9, s9, 8
        s_and_b32 s12, s3, 3           ; w&3
        s_lshl_b32 s11, s12, 6
        s_add_u32 s9, s9, s11
        s_mul_i32 s9, s9, 1280
        s_lshl_b32 s10, s10, 7
        s_add_u32 s68, s9, s10
        v_lshrrev_b32 v59, 3, v1
        v_mul_u32_u24 v59, 1280, v59
        v_and_b32 v60, 7, v1
        v_lshl_add_u32 v59, v60, 4, v59
        v_mul_u32_u24 v60, 3072, v5
        v_lshl_add_u32 v60, v4, 4, v60
        v_lshlrev_b32 v62, 4, v1
        s_lshl_b32 s9, s100, 5
        s_lshl_b32 s10, s12, 3
        s_add_u32 s9, s9, s10
        s_mul_i32 s9, s9, 3072
        s_lshl_b32 s10, s99, 8
        s_add_u32 s69, s9, s10                 ; w1 soffset
        s_sub_u32 s11, s2, {S2_0}
        s_mul_i32 s11, s11, 20480
        s_mul_i32 s71, s12, 5120
        s_add_u32 s70, s11, s71
        s_lshr_b32 s9, s2, 3
        s_lshl_b32 s9, s9, 7
        s_add_u32 s9, s9, {PG}
        s_add_u32 s34, s42, s9
        s_addc_u32 s35, s43, 0
        s_and_b32 s10, s2, 7
        s_lshl_b32 s10, s10, 2
        s_add_u32 s36, s9, s10
        s_lshl_b32 s37, {TAG}, 8
        s_add_u32 s9, s37, 3
        v_mov_b32 v61, s9
        """)
    def hshare(st, which):
        for j in range(4):
            st.other(('h' + which, 0))
            a(f"s_mov_b32 m0, s{(20 if which == 'k' else 64)+j}")
            a(f"buffer_load_dwordx4 v{2 if which == 'k' else 3}, {sK if which == 'k' else sV}, s{16+j} offen nt lds")
    def wo_dma(st): pass
    def tail_dma(st):
        if not early: return
        lab = a.label("L_td"); lp = a.label("L_tp")
        N1 = 240 - 2 * N2
        a(f"s_cmp_lt_u32 s3, 4\ns_cbranch_scc1 {lab}")
        srd(56, 24, 7864320)
        a(f"""
        v_mov_b32 v6, {L_CNT}
        {lp}:
        ds_read2_b32 v[58:59], v6 offset0:3 offset1:6
        s_waitcnt lgkmcnt(0)
        v_min_u32 v7, v58, v59
        v_readfirstlane_b32 s36, v59
        v_cmp_eq_u32 vcc, 0, v7
        s_cbranch_vccz {lp}_ok
        s_sleep 1
        s_sub_u32 s84, s84, 1
        s_cmp_lg_u32 s84, 0
        s_cbranch_scc1 {lp}
        {lp}_ok:
        v_lshrrev_b32 v59, 3, v1
        v_mul_u32_u24 v59, 1280, v59
        v_and_b32 v7, 7, v1
        v_lshl_add_u32 v59, v7, 4, v59
        s_sub_u32 s36, s36, 1             ; ticket
        s_add_u32 s35, s36, {N2}
        s_cmp_lt_u32 s36, {N2}
        s_cselect_b32 s35, s36, s35       ; unit A
        s_mul_i32 s9, s35, 6554
        s_lshr_b32 s9, s9, 16             ; ob
        s_mul_i32 s10, s9, 10
        s_sub_u32 s10, s35, s10           ; oc
        s_lshl_b32 s11, s9, 2
        s_and_b32 s12, s3, 3
        s_add_u32 s11, s11, s12
        s_mul_i32 s68, s11, {64*1280}
        s_lshl_b32 s10, s10, 7
        s_add_u32 s68, s68, s10
        s_cmp_lt_u32 s36, {N2 + N1}
        s_cselect_b32 s68, s68, 0x10000000
        s_lshl_b32 s12, s12, 13
        """)
        for i in range(8):
            a(f"s_add_u32 m0, s12, {L_WO + i*1024}")
            a(f"buffer_load_dwordx4 v59, {sA}, s68 offen nt lds")
            if i < 7: a("s_add_u32 s68, s68, 10240")
        a(f"{lab}:")
        st.rolex = 8
    def wo_late():
        srd(56, 24, 7864320)
        a("s_and_b32 s9, s3, 3\ns_lshl_b32 s9, s9, 13")
        a("s_barrier")
        for i in range(8):
            a(f"s_add_u32 m0, s9, {L_WO + i*1024}")
            a(f"buffer_load_dwordx4 v59, {sA}, s68 offen nt lds")
            if i < 7: a("s_add_u32 s68, s68, 10240")
    def w1_late():
        a("s_barrier")
        srd(60, 28, 1966080)
        srd(64, 30, 1966080)
        a("s_lshl_b32 s9, s3, 11")
        for i in range(2):
            a(f"s_add_u32 m0, s9, {L_W1 + i*1024}\nbuffer_load_dwordx4 v60, {sB}, s69 offen nt lds")
            a(f"s_add_u32 m0, s9, {L_W1 + 8192 + i*1024}\nbuffer_load_dwordx4 v60, {sC}, s69 offen nt lds")
            if i < 1: a(f"s_add_u32 s69, s69, {4*3072}")
        lab = a.label("L_nowd")
        a(f"s_cmp_lt_u32 s2, {S2_0}\ns_cbranch_scc1 {lab}")
        srd(56, 32, 1966080)
        for i in range(5):
            a(f"s_add_u32 m0, s71, {L_WD + i*1024}\nbuffer_load_dwordx4 v62, {sA}, s70 offen nt lds")
            if i < 4: a("s_add_u32 s70, s70, 1024")
        a(f"s_waitcnt vmcnt(5)\ns_branch L_t_b2\n{lab}:\ns_waitcnt vmcnt(0)")
    def lpoll(name, off, target):
        a(f"""
        {name}:
        ds_read_b32 v11, v10 offset:{off}
        s_waitcnt lgkmcnt(0)
        v_cmp_gt_u32 vcc, {target}, v11
        s_cbranch_vccz {name}_ok
        s_sleep 1
        s_sub_u32 s84, s84, 1
        s_cmp_lg_u32 s84, 0
        s_cbranch_scc1 {name}
        {name}_ok:
        """)

    def attention(st, nv1, kind):
        st.last_pair = None
        a(f"""
        v_and_b32 v6, 1, v4
        v_lshl_add_u32 v6, v6, 2, v5
        v_lshlrev_b32 v6, 4, v6
        v_add_u32 v6, {L_Q}, v6
        ds_read_b128 v[8:11], v6
        ds_read_b128 v[12:15], v6 offset:128
        ds_read_b128 v[16:19], v6 offset:256
        """)
        nxt = nv1
        def more():
            nonlocal nxt
            if nxt < 8:
                st.tile('v', nxt); nxt += 1
        if kind == 'A': wo_dma(st)
        a(f"""
        v_and_b32 v6, 1, v4
        v_mov_b32 v7, 0xffff
        v_lshlrev_b32 v6, 4, v6
        v_lshlrev_b32 v7, v6, v7
        v_bfe_u32 v6, v4, 1, 2            ; r
        v_cmp_eq_u32 vcc, 0, v6
        v_cndmask_b32 v52, 0, v7, vcc
        v_cmp_eq_u32 vcc, 1, v6
        v_cndmask_b32 v53, 0, v7, vcc
        v_cmp_eq_u32 vcc, 2, v6
        v_cndmask_b32 v54, 0, v7, vcc
        v_cmp_eq_u32 vcc, 3, v6
        v_cndmask_b32 v55, 0, v7, vcc
        s_waitcnt lgkmcnt(0)
        """)
        for T in range(8):
            st.wait(('k', T))
            Dd = 20 + 4 * T
            for s in range(3):
                k = KB + T * 12 + s * 4
                c = "0" if s == 0 else f"v[{Dd}:{Dd+3}]"
                a(f"v_mfma_f32_16x16x32_bf16 v[{Dd}:{Dd+3}], v[{k}:{k+3}], v[{8+4*s}:{11+4*s}], {c}")
        more()
        for T in range(8):
            Dd = 20 + 4 * T
            a(f"v_cndmask_b32 v{Dd}, v{Dd}, v{Dd+1}, {mODD}")
            a(f"v_cndmask_b32 v{Dd+2}, v{Dd+2}, v{Dd+3}, {mODD}")
            a(f"v_cndmask_b32 v{Dd}, v{Dd}, v{Dd+2}, {mNHI}")
        S = [20 + 4 * T for T in range(8)]
        for T in range(8):
            a(f"v_add_f32_dpp v{S[T]}, v{S[T]}, v{S[T]} quad_perm:[1,0,3,2] row_mask:0xf bank_mask:0xf")
        for T in range(0, 8, 2):
            rnd2(S[T], S[T+1], S[T] + 1)
        for T in range(8):
            a(f"v_mul_f32 v{S[T]}, {hex(SCALE)}, v{S[T]}")
        for T in range(0, 8, 2):
            rnd2(S[T], S[T+1], S[T] + 1)
        a(f"""
        v_max3_f32 v56, v{S[0]}, v{S[1]}, v{S[2]}
        v_max3_f32 v56, v56, v{S[3]}, v{S[4]}
        v_max3_f32 v56, v56, v{S[5]}, v{S[6]}
        v_max_f32 v56, v56, v{S[7]}
        """)
        ror(56, 8, "v_max_f32")
        xrow_sum(56, 58, "v_max_f32")
        for T in range(8):
            a(f"v_sub_f32 v{S[T]}, v{S[T]}, v56")
        for T in range(8):
            a(f"v_mul_f32 v{S[T]}, {hex(LOG2E)}, v{S[T]}")
        for T in range(8):
            a(f"v_exp_f32 v{S[T]}, v{S[T]}")
        a(f"v_add_f32 v57, v{S[0]}, v{S[1]}")
        for T in range(2, 8):
            a(f"v_add_f32 v57, v57, v{S[T]}")
        for T in range(8):
            a(f"v_cvt_pk_bf16_f32 v{8+T}, v{S[T]}, v{S[T]}")
        ror(57, 8)
        xrow_sum(57, 58)
        a(f"""
        s_lshl_b32 s9, s3, 3
        s_add_u32 s9, s9, {L_MLW}
        v_mov_b32 v6, s9
        ds_write_b64 v6, v[56:57]
        """)
        TS(2)
        def pv(T):
            A = 32 + 4 * (T % 2)
            for r in range(4):
                a(f"v_and_b32 v{A+r}, v{8+T}, v{52+r}")
            if T == 7 and not early:
                lab = a.label("L_tk")
                a(f"s_cmp_eq_u32 s3, 7\ns_cbranch_scc0 {lab}\ns_mov_b32 s36, 1\ns_atomic_add s36, s[40:41], 0 glc\n{lab}:")
            st.wait(('v', T))
            for s in range(3):
                v = VB + T * 12 + s * 4
                Dd = 20 + 4 * s
                c = "0" if T == 0 else f"v[{Dd}:{Dd+3}]"
                a(f"v_mfma_f32_16x16x32_bf16 v[{Dd}:{Dd+3}], v[{A}:{A+3}], v[{v}:{v+3}], {c}")
        pvn = 0
        while nxt < 8:
            more()
            while pvn <= nxt - 3:
                pv(pvn); pvn += 1
        st.D = 0
        if kind == 'A': tail_dma(st)
        while pvn < 8:
            pv(pvn); pvn += 1
        a("s_branch L_tail")

    st = Stream(0)
    a("s_barrier")
    a(f"""
    v_mov_b32 v10, {L_CNT}
    v_mov_b32 v11, 1
    s_waitcnt vmcnt({NWQ0})
    """)
    EX(1, 0)
    a("ds_add_u32 v10, v11")
    EXALL()
    st.ops = [('wq', 0)] * NWQ0
    st.D = D1
    for i in range(NWQ0, 4):
        st.other(('wq', 0)); wq_dma(i)
    st.sigs.append((('wq', 0), 4))
    a("s_lshr_b32 s13, s2, 3\ns_add_u32 s13, s13, s2")
    if prio: a("s_setprio 2")
    st.tile('k', 0)
    a(f"s_waitcnt lgkmcnt(0)\ns_add_u32 {TAG}, {TAG}, 1")
    setup2()
    st.last_pair = None
    st.pace = S > 0
    st.tk = bool(early)
    st.tile('k', 1)
    assert not st.sigs
    a("s_mov_b64 vcc, 0")
    if dly[1]: a(f"s_sleep {dly[1]}")
    st.D = D; st.DL = DL if DL < D else 0
    for T in range(2, 8):
        st.tile('k', T)
        if T in (1, 3, 5, 7): TS2(8 + T // 2)
        if T == 3:
            hshare(st, 'k'); st.sigs.append((('hk', 0), 16))
    for T in range(NV1):
        if T == NL: st.DL = 0
        st.tile('v', T)
        if T in (1, 3): TS2(12 + T // 2)
        if T == 0:
            hshare(st, 'v'); st.sigs.append((('hv', 0), 20))
    st.DL = 0
    assert not st.sigs
    TS(1)
    a(f"""
    ds_read_b32 v11, v10 offset:8
    s_waitcnt lgkmcnt(0)
    v_cmp_eq_u32 vcc, 0, v11
    s_cbranch_vccnz L_late
    """)
    st2 = copy.deepcopy(st)
    attention(st, NV1, 'A')
    a("L_late:")
    wo_dma(st2)
    st2.last_pair = None
    for T in range(NV1, 8): st2.tile('v', T)
    st2.D = 0
    tail_dma(st2)
    lpoll("L_late_q", 8, 1)
    a("L_attB:")
    attention(st2, 8, 'B')

    a("L_helper:")
    a(f"s_setprio 3\ns_waitcnt lgkmcnt(0)\ns_add_u32 {TAG}, {TAG}, 1\ns_barrier")
    if noprefix:
        for i in range(NWQ0, 4): wq_dma(i)
        a("s_waitcnt vmcnt(0)\ns_branch L_h_qdone")
    a("s_cmp_ge_u32 s2, 240\ns_cbranch_scc1 L_h_nounit2")
    a(f"s_waitcnt vmcnt({8+3+NWQ0})")
    for t in range(5):
        for r in range(4):
            src = 160 + 4 * t + r
            a(f"""
            v_lshlrev_b32 v8, 16, v{src}
            v_and_b32 v9, 0xffff0000, v{src}
            v_mul_f32 v10, {hex(LOG2E | 0x80000000)}, v8
            v_mul_f32 v11, {hex(LOG2E | 0x80000000)}, v9
            v_exp_f32 v10, v10
            v_exp_f32 v11, v11
            v_add_f32 v10, 1.0, v10
            v_add_f32 v11, 1.0, v11
            v_rcp_f32 v10, v10
            v_rcp_f32 v11, v11
            v_mul_f32 v8, v8, v10
            v_mul_f32 v9, v9, v11
            v_cvt_pk_bf16_f32 v{src}, v8, v9
            """)
    a(f"""
    v_lshrrev_b32 v6, 2, v4
    v_and_b32 v7, 3, v4
    v_lshl_add_u32 v6, v5, 3, v6   ; 8g + r
    v_lshlrev_b32 v8, 7, v6
    v_lshl_add_u32 v8, v7, 3, v8
    v_lshlrev_b32 v53, 8, v6
    v_lshl_add_u32 v53, v7, 3, v53
    v_mov_b32 v10, {L_CNT}
    s_waitcnt vmcnt({NWQ0})
    """)
    for i in range(NWQ0, 4): wq_dma(i)
    lpoll("L_h_lpoll", 0, 7)
    TS(13)
    if dly[0]: a(f"s_sleep {dly[0]}")
    def wm_reads(t):
        for nt in range(4):
            r = 208 + (t % 2) * 16 + nt * 4
            off = L_WM + t * 4096 + nt * 32
            a(f"ds_read_b64_tr_b16 v[{r}:{r+1}], v8 offset:{off}")
            a(f"ds_read_b64_tr_b16 v[{r+2}:{r+3}], v8 offset:{off+512}")
    wm_reads(0)
    for t in range(5):
        a("s_waitcnt lgkmcnt(0)")
        if t < 4: wm_reads(t + 1)
        for nt in range(4):
            r = 208 + (t % 2) * 16 + nt * 4
            Dd = 20 + 4 * nt
            c = "0" if t == 0 else f"v[{Dd}:{Dd+3}]"
            a(f"v_mfma_f32_16x16x32_bf16 v[{Dd}:{Dd+3}], v[{160+4*t}:{163+4*t}], v[{r}:{r+3}], {c}")
    a(f"""
    v_lshlrev_b32 v9, 2, v1
    s_mul_i32 s11, s88, {4*15360}
    s_lshl_b32 s12, s89, 8
    s_add_u32 s11, s11, s12
    s_add_u32 s11, s11, {MODP}
    """)
    sel_q4([36, 40, 44, 48], [[20 + 4 * q + v for v in range(4)] for q in range(4)])
    for v in range(4): quad_gather(36 + 4 * v, 36 + 4 * v)
    EX(0x11111111)
    for v in range(4):
        if 'st' not in abl: a(f"buffer_store_dwordx4 v[{36+4*v}:{39+4*v}], v9, {sWS}, s11 offen sc1")
        if v < 3: a("s_add_u32 s11, s11, 15360")
    EXALL()
    TS(1)
    a(f"""
    s_cmp_ge_u32 s89, 20
    s_cbranch_scc1 L_h_nof1
    s_cmp_ge_u32 s89, 10
    s_cselect_b32 s9, 10, 0
    s_cselect_b32 s10, 2, 0
    s_sub_u32 s9, s89, s9          ; cbk%10
    s_lshr_b32 s11, s9, 1
    s_and_b32 s9, s9, 1
    s_add_u32 s10, s10, s9
    s_lshl_b32 s9, s88, 2
    s_add_u32 s10, s10, s9         ; slot
    s_lshl_b32 s10, s10, 2
    s_mul_i32 s11, s11, {48*128}
    s_add_u32 s11, s11, s10
    s_add_u32 s11, s11, {F1}
    v_lshlrev_b32 v9, 7, v1
    v_mov_b32 v8, {TAG}
    """)
    EX(0xffffffff, 0xffff)
    a(f"buffer_store_dword v8, v9, {sWS}, s11 offen sc1")
    EXALL()
    a("L_h_nof1:")
    XU = 208
    for i in range(20):
        a(f"v_lshlrev_b32 v{XU+2*i}, 16, v{180+i}\nv_and_b32 v{XU+1+2*i}, 0xffff0000, v{180+i}")
    a(f"v_add_f32 v10, v{XU}, v{XU+1}")
    for i in range(2, 40):
        a(f"v_add_f32 v10, v10, v{XU+i}")
    ror(10, 4); ror(10, 8); xrow_sum(10, 11)
    a(f"v_mul_f32 v10, {hex(0x3ACCCCCD)}, v10")
    for i in range(40):
        a(f"v_sub_f32 v{XU+i}, v{XU+i}, v10")
    a(f"v_mul_f32 v12, v{XU}, v{XU}")
    for i in range(1, 40):
        a(f"v_fmac_f32 v12, v{XU+i}, v{XU+i}")
    ror(12, 4); ror(12, 8); xrow_sum(12, 11)
    a(f"v_mul_f32 v12, {hex(0x3ACCCCCD)}, v12")
    rnd2(10, 12, 11)
    a(f"v_add_f32 v12, {hex(0x3727C5AC)}, v12")
    rnd1(12)
    a("v_sqrt_f32 v12, v12")
    rnd1(12)
    a("v_rcp_f32 v12, v12")
    for i in range(4):
        a(f"v_lshlrev_b32 v{44+2*i}, 16, v{200+i}\nv_and_b32 v{45+2*i}, 0xffff0000, v{200+i}")
    for i in range(8):
        a(f"v_sub_f32 v{44+i}, v{44+i}, v10")
    for i in range(0, 8, 2): rnd2(44 + i, 45 + i, 11)
    for i in range(8):
        a(f"v_mul_f32 v{44+i}, v{44+i}, v12")
    for i in range(0, 8, 2): rnd2(44 + i, 45 + i, 11)
    a(f"""
    v_mov_b32 v10, {L_CNT}
    s_waitcnt vmcnt({0 if 'st' in abl else 4})
    """)
    lpoll("L_h_lpoll2", 4, 7)
    def wq_reads(t, base):
        for nt in range(8):
            r = base + nt * 4
            off = L_WQ + t * 8192 + nt * 32
            a(f"ds_read_b64_tr_b16 v[{r}:{r+1}], v53 offset:{off}")
            a(f"ds_read_b64_tr_b16 v[{r+2}:{r+3}], v53 offset:{off+1024}")
            if nt == 3: a("s_waitcnt lgkmcnt(4)")
    wq_reads(0, 160)
    a(f"""
    v_and_b32 v6, 3, v4
    v_lshrrev_b32 v7, 2, v4
    v_mul_u32_u24 v8, 15360, v6
    v_lshl_add_u32 v8, v7, 6, v8
    v_lshl_add_u32 v8, v5, 4, v8     ; b*15360 + tq*64 + g*16
    s_lshl_b32 s13, s90, 9           ; kq*512
    s_add_u32 s13, s13, {MODP}
    """)
    a(f"s_waitcnt lgkmcnt(0)\ns_lshl_b32 s9, s101, 7\ns_add_u32 s9, s9, {F1}")
    fpoll("L_h_sp1", "s9", 16, 16, 56, sleep=1)
    a(f"""
    L_h_poll1:
    s_mov_b32 s11, s13
    """)
    if 'g1' not in abl:
        for ks in range(4):
            r = 192 + ks * 16
            for j, off in enumerate((0, 256, 2560, 2816)):
                a(f"buffer_load_dwordx4 v[{r+4*j}:{r+4*j+3}], v8, {sWS}, s11 offen offset:{off} sc1")
            if ks < 3: a("s_add_u32 s11, s11, 61440")
        a("s_waitcnt vmcnt(0)")
        chk([195 + 4 * i for i in range(16)], 10, "L_h_poll1", sleep=2)
    TS(4)
    for i in range(16): unpack4(192 + 4 * i)
    for i in range(16):
        a(f"v_add_f32 v{192+i}, v{192+i}, v{208+i}\nv_add_f32 v{224+i}, v{224+i}, v{240+i}")
    for i in range(16):
        a(f"v_add_f32 v{192+i}, v{192+i}, v{224+i}")
    wq_reads(1, 224)
    for i in range(0, 16, 2): rnd2(192 + i, 193 + i, 11)
    for i in range(8):
        a(f"v_add_f32 v{200+i}, 1.0, v{200+i}")
    for i in range(0, 8, 2): rnd2(200 + i, 201 + i, 11)
    for i in range(8):
        a(f"v_mul_f32 v{44+i}, v{44+i}, v{200+i}")
    for i in range(0, 8, 2): rnd2(44 + i, 45 + i, 11)
    for i in range(8):
        a(f"v_add_f32 v{44+i}, v{44+i}, v{192+i}")
    for i in range(4):
        a(f"v_cvt_pk_bf16_f32 v{40+i}, v{44+2*i}, v{45+2*i}")
    a(f"""
    v_lshlrev_b32 v8, 8, v6
    v_lshl_add_u32 v9, v5, 4, v8       ; b*256 + g*16
    v_add_u32 v9, {L_HB}, v9
    v_lshl_add_u32 v8, v7, 5, v8
    v_lshl_add_u32 v8, v5, 3, v8       ; b*256 + tq*32 + g*8
    v_add_u32 v8, {L_HB}, v8
    s_waitcnt lgkmcnt(0)
    ds_write_b64 v8, v[40:41]
    ds_write_b64 v8, v[42:43] offset:128
    s_waitcnt lgkmcnt(0)
    ds_read_b128 v[192:195], v9
    ds_read_b128 v[196:199], v9 offset:64
    ds_read_b128 v[200:203], v9 offset:128
    ds_read_b128 v[204:207], v9 offset:192
    s_waitcnt lgkmcnt(0)
    """)
    for t in range(4):
        base = 160 if t % 2 == 0 else 224
        if t >= 2: a("s_waitcnt lgkmcnt(0)")
        for nt in range(8):
            r = base + nt * 4
            Dd = 20 + 4 * nt
            c = "0" if t == 0 else f"v[{Dd}:{Dd+3}]"
            a(f"v_mfma_f32_16x16x32_bf16 v[{Dd}:{Dd+3}], v[{192+4*t}:{195+4*t}], v[{r}:{r+3}], {c}")
        if t < 2:
            a("s_nop 7")
            wq_reads(t + 2, base)
    a(f"""
    v_lshlrev_b32 v9, 2, v1
    s_mul_i32 s11, s90, {4*24576}
    s_lshl_b32 s12, s91, 9
    s_add_u32 s11, s11, s12
    s_add_u32 s11, s11, {QP}
    """)
    sel_q4([160, 164, 168, 172], [[20 + 4 * q + v for v in range(4)] for q in range(4)])
    sel_q4([176, 180, 184, 188], [[36 + 4 * q + v for v in range(4)] for q in range(4)])
    for v in range(8): quad_gather(160 + 4 * v, 160 + 4 * v)
    EX(0x11111111)
    for v in range(4):
        if 'st' not in abl:
            a(f"buffer_store_dwordx4 v[{160+4*v}:{163+4*v}], v9, {sWS}, s11 offen sc1")
            a(f"buffer_store_dwordx4 v[{176+4*v}:{179+4*v}], v9, {sWS}, s11 offen offset:256 sc1")
        if v < 3: a("s_add_u32 s11, s11, 24576")
    EXALL()
    a(f"""
    s_lshl_b32 s9, s91, 1          ; 2qb
    s_mul_i32 s10, s9, 171
    s_lshr_b32 s10, s10, 9
    s_add_u32 s9, s9, 1
    s_mul_i32 s9, s9, 171
    s_lshr_b32 s9, s9, 9
    v_mov_b32 v8, s10
    v_mov_b32 v9, s9
    v_cndmask_b32 v8, v8, v9, {mNHI}     ; h
    v_mul_u32_u24 v9, 3, v8
    v_lshrrev_b32 v9, 1, v9
    v_sub_u32 v9, s91, v9          ; j
    s_lshl_b32 s9, s90, 1
    v_add_u32 v9, s9, v9           ; slot
    v_and_b32 v10, 7, v1
    v_lshlrev_b32 v10, 2, v10      ; 4b + 16s
    v_and_b32 v11, 3, v8
    v_add_u32 v10, v10, v11
    v_lshrrev_b32 v11, 2, v8
    v_lshl_add_u32 v10, v10, 3, v11      ; wg
    v_lshlrev_b32 v10, 7, v10
    v_lshl_add_u32 v10, v9, 2, v10
    v_mov_b32 v8, {TAG}
    s_mov_b32 s9, {F2}
    """)
    EX(0xffff, 0)
    a(f"buffer_store_dword v8, v10, {sWS}, s9 offen sc1")
    EXALL()
    TS(5)
    a(f"""
    v_mov_b32 v10, {L_CNT}
    v_mov_b32 v11, 1
    ds_write_b32 v10, v11 offset:12
    """)
    a("s_branch L_h_q")
    a("L_h_nounit2:")
    a(f"""
    v_mov_b32 v10, {L_CNT}
    v_mov_b32 v11, 1
    ds_write_b32 v10, v11 offset:12
    """)
    a("L_h_q:")
    a(f"""
    v_min_u32 v8, 47, v1
    v_lshlrev_b32 v8, 4, v8
    s_mul_i32 s11, s5, 24576
    s_mul_i32 s12, s4, 768
    s_add_u32 s11, s11, s12
    s_add_u32 s11, s11, {QP}
    s_waitcnt lgkmcnt(0)
    """)
    a(f"s_lshl_b32 s9, s2, 7\ns_add_u32 s9, s9, {F2}")
    fpoll("L_h_sp2", "s9", 16, 10, 56, sleep=1)
    a(f"""
    L_h_poll2:
    s_mov_b32 s12, s11
    """)
    if 'g2' not in abl:
        for kq in range(5):
            a(f"buffer_load_dwordx4 v[{20+4*kq}:{23+4*kq}], v8, {sWS}, s12 offen sc1")
            if kq < 4: a(f"s_add_u32 s12, s12, {4*24576}")
        a("s_waitcnt vmcnt(0)")
        chk(range(23, 40, 4), 9, "L_h_poll2", sleep=2)
    for i in range(5): unpack4(20 + 4 * i)
    for v in range(4):
        a(f"v_add_f32 v{20+v}, v{20+v}, v{24+v}\nv_add_f32 v{28+v}, v{28+v}, v{32+v}")
    for v in range(4):
        a(f"v_add_f32 v{20+v}, v{20+v}, v{28+v}")
    for v in range(4):
        a(f"v_add_f32 v{20+v}, v{20+v}, v{36+v}")
    a(f"""
    v_cvt_pk_bf16_f32 v10, v20, v21
    v_cvt_pk_bf16_f32 v11, v22, v23
    v_lshrrev_b32 v8, 1, v8
    v_add_u32 v8, {L_Q}, v8
    ds_write_b64 v8, v[10:11]
    L_h_qdone:
    v_mov_b32 v10, {L_CNT}
    v_mov_b32 v11, 1
    s_waitcnt lgkmcnt(0)
    ds_write_b32 v10, v11 offset:8
    """)
    TS(6)
    if noprefix: a("ds_write_b32 v10, v11 offset:12")
    a("s_setprio 0")
    if not noprefix and 'g3' not in abl:
        a("s_cmp_ge_u32 s2, 240\ns_cbranch_scc1 L_h_noconst")
        a(f"""
        v_mul_u32_u24 v13, 15360, v5
        v_lshrrev_b32 v14, 1, v4
        v_lshl_add_u32 v13, v14, 4, v13     ; b*15360 + (n>>1)*16
        s_lshl_b32 s13, s100, 7
        s_add_u32 s13, s13, {MODP + 2*2560}
        L_h_poll3:
        s_mov_b32 s11, s13
        """)
        for ks in range(4):
            r = 192 + ks * 16
            a(f"buffer_load_dwordx4 v[{r}:{r+3}], v13, {sWS}, s11 offen sc1")
            a(f"buffer_load_dwordx4 v[{r+4}:{r+7}], v13, {sWS}, s11 offen offset:2560 sc1")
            a("s_add_u32 s12, s11, 5120")
            a(f"buffer_load_dwordx4 v[{r+8}:{r+11}], v13, {sWS}, s12 offen sc1")
            a(f"buffer_load_dwordx4 v[{r+12}:{r+15}], v13, {sWS}, s12 offen offset:2560 sc1")
            if ks < 3: a("s_add_u32 s11, s11, 61440")
        a("s_waitcnt vmcnt(0)")
        chk([195 + 4 * i for i in range(16)], 10, "L_h_poll3", sleep=2)
        for i in range(16): unpack4(192 + 4 * i)
        for i in range(16):
            a(f"v_add_f32 v{192+i}, v{192+i}, v{208+i}\nv_add_f32 v{224+i}, v{224+i}, v{240+i}")
        for i in range(16):
            a(f"v_add_f32 v{192+i}, v{192+i}, v{224+i}")
        for ty in range(4):
            a(f"v_cndmask_b32 v{208+2*ty}, v{192+4*ty}, v{194+4*ty}, {mODD}")
            a(f"v_cndmask_b32 v{209+2*ty}, v{193+4*ty}, v{195+4*ty}, {mODD}")
        rnd2(208, 209, 11); rnd2(212, 213, 11); rnd2(214, 215, 11)
        a(f"""
        v_cvt_pk_bf16_f32 v210, v210, v211
        v_add_f32 v212, 1.0, v212
        v_add_f32 v213, 1.0, v213
        v_cvt_pk_bf16_f32 v211, v212, v213
        v_lshlrev_b32 v212, 16, v211
        v_and_b32 v213, 0xffff0000, v211
        v_lshlrev_b32 v216, 16, v52
        v_and_b32 v217, 0xffff0000, v52
        v_lshlrev_b32 v8, 3, v1
        v_add_u32 v8, {L_CC}, v8
        ds_write_b64 v8, v[208:209]
        ds_write_b64 v8, v[212:213] offset:512
        ds_write_b64 v8, v[216:217] offset:1024
        ds_write_b64 v8, v[214:215] offset:1536
        v_lshlrev_b32 v8, 2, v1
        v_add_u32 v8, {L_SA}, v8
        ds_write_b32 v8, v211
        ds_write_b32 v8, v210 offset:256
        """)

        a("L_h_noconst:")
        a(f"s_waitcnt lgkmcnt(0)\nv_mov_b32 v10, {L_CNT}")
    sth = Stream(0)
    setup2()
    if noprefix: lpoll("L_h_np", 4, 7)
    a(f"v_add_u32 v8, {L_HK}, v62")
    lpoll("L_h_hk", 16, 7)
    for i in range(24):
        a(f"ds_read_b128 v[{64+4*i}:{67+4*i}], v8 offset:{i*1024}")
        if i % 8 == 7: a("s_waitcnt lgkmcnt(0)")
    lpoll("L_h_hv", 20, 7)
    for i in range(24):
        a(f"ds_read_b128 v[{160+4*i}:{163+4*i}], v8 offset:{24576 + i*1024}")
        if i % 8 == 7: a("s_waitcnt lgkmcnt(0)")
    a("s_branch L_attB")

    a("L_tail:")
    a(f"""
    v_lshrrev_b32 v6, 3, v4            ; u
    v_mul_u32_u24 v6, 768, v6
    v_and_b32 v7, 7, v4
    v_lshl_add_u32 v6, v7, 5, v6
    v_and_b32 v7, 1, v5
    v_lshl_add_u32 v6, v7, 4, v6
    s_mul_i32 s8, s3, 1536
    s_add_u32 s8, s8, {L_RED}
    v_add_u32 v6, s8, v6
    v_mov_b32 v17, {L_CNT}
    s_nop 3
    s_mov_b64 exec, {mRED}
    ds_write_b128 v6, v[20:23]
    ds_write_b128 v6, v[24:27] offset:256
    ds_write_b128 v6, v[28:31] offset:512
    s_mov_b64 exec, -1
    s_cmp_eq_u32 s3, {7 if not early else 99}
    s_cbranch_scc0 L_t_notk
    s_waitcnt lgkmcnt(0)
    s_add_u32 s36, s36, 1
    v_mov_b32 v7, s36
    ds_write_b32 v17, v7 offset:24
    L_t_notk:
    s_waitcnt lgkmcnt(0)
    """)
    TS(7)
    a("s_barrier")
    a("s_cmp_ge_u32 s3, 3\ns_cbranch_scc1 L_t_nos1")
    a(f"""
    v_mov_b32 v6, {L_MLW}
    ds_read_b128 v[20:23], v6
    ds_read_b128 v[24:27], v6 offset:16
    ds_read_b128 v[28:31], v6 offset:32
    ds_read_b128 v[32:35], v6 offset:48
    v_lshlrev_b32 v7, 2, v0
    v_add_u32 v6, {L_RED}, v7
    """)
    for i in range(16):
        a(f"ds_read_b32 v{64+i}, v6 offset:{i*768}")
    a(f"""
    s_lshl_b32 s8, s5, 1
    s_add_u32 s8, s8, s6
    s_mul_i32 s8, s8, 96
    s_mul_i32 s9, s4, 3
    s_add_u32 s8, s8, s9
    s_add_u32 s8, s8, s3
    s_mul_i32 s8, s8, 384
    s_add_u32 s8, s8, {OPX}
    v_lshlrev_b32 v7, 2, v1
    s_add_u32 s9, s9, s3               ; blk
    s_lshr_b32 s12, s9, 2
    s_mul_i32 s12, s12, 1280
    s_and_b32 s9, s9, 3
    s_lshl_b32 s9, s9, 5
    s_add_u32 s12, s12, s9
    s_lshl_b32 s9, s5, 3
    s_add_u32 s12, s12, s9
    s_lshl_b32 s9, s6, 2
    s_add_u32 s12, s12, s9
    s_add_u32 s12, s12, {FO}
    v_lshlrev_b32 v16, 7, v1
    s_waitcnt lgkmcnt(15)
    v_max3_f32 v8, v20, v22, v24
    v_max3_f32 v8, v8, v26, v28
    v_max3_f32 v8, v8, v30, v32
    v_max_f32 v8, v8, v34
    """)
    for w in range(8):
        a(f"v_sub_f32 v{20+2*w}, v{20+2*w}, v8")
    for w in range(8):
        a(f"v_mul_f32 v{20+2*w}, {hex(LOG2E)}, v{20+2*w}")
    for w in range(8):
        a(f"v_exp_f32 v{20+2*w}, v{20+2*w}")
    a("s_waitcnt lgkmcnt(0)")
    for w in range(8):
        a(f"v_add_f32 v{64+2*w}, v{64+2*w}, v{65+2*w}")
    a("v_mul_f32 v12, v20, v64\nv_mul_f32 v9, v20, v21")
    for w in range(1, 8):
        a(f"v_fmac_f32 v12, v{20+2*w}, v{64+2*w}\nv_fmac_f32 v9, v{20+2*w}, v{21+2*w}")
    a(f"v_mov_b32 v10, 0\nv_mov_b32 v11, {TAG}")
    quad_gather(12, 12)
    EX(0x11111111)
    a(f"buffer_store_dwordx4 v[12:15], v7, {sWS}, s8 offen sc1")
    EX(1, 0)
    a(f"buffer_store_dwordx4 v[8:11], v7, {sWS}, s8 offen offset:256 sc1")
    EX(0x3ff, 0)
    a(f"buffer_store_dword v11, v16, {sWS}, s12 offen sc1")
    EXALL()
    TS(8)
    a("L_t_nos1:")
    N1 = 240 - 2 * N2
    a(f"""
    ds_read_b32 v18, v17 offset:24
    s_and_b32 s8, s3, 3               ; w4
    s_cmp_lt_u32 s3, 4
    s_cselect_b32 s26, 0, {N1}
    s_cselect_b32 s27, {L_WOB}, {L_WO}
    s_cselect_b32 s15, {L_WRB - L_WR}, 0
    s_add_u32 s15, s15, {L_WR}
    s_add_u32 s26, s26, {N2}
    s_waitcnt lgkmcnt(0)
    v_readfirstlane_b32 s37, v18      ; ticket
    s_barrier
    """)
    srd(56, 24, 7864320)
    a(f"""
    s_sub_u32 s37, s37, 1
    s_cmp_ge_u32 s37, {N2 + N1}
    s_cselect_b32 s101, 1, 0
    s_add_u32 s35, s37, {N2}
    s_cmp_lt_u32 s37, {N2}
    s_cselect_b32 s36, s37, s35
    s_cmp_lt_u32 s3, 4
    s_cselect_b32 s35, s35, s36       ; unit
    s_mov_b32 s34, 0
    s_cmp_ge_u32 s37, s26
    s_cbranch_scc1 L_t_nowo
    s_mov_b32 s34, 1
    s_mul_i32 s9, s35, 6554
    s_lshr_b32 s9, s9, 16             ; ob
    s_mul_i32 s10, s9, 10
    s_sub_u32 s10, s35, s10           ; oc
    s_lshl_b32 s11, s9, 2
    s_add_u32 s11, s11, s8
    s_mul_i32 s68, s11, {64*1280}
    s_lshl_b32 s12, s10, 7
    s_add_u32 s68, s68, s12
    s_lshl_b32 s12, s8, 13
    s_add_u32 s27, s27, s12
    {'s_cmp_ge_u32 s3, 4' if early else ''}
    {'s_cbranch_scc1 L_t_nowo' if early else ''}
    """)
    for i in range(8):
        a(f"s_add_u32 m0, s27, {i*1024}")
        a(f"buffer_load_dwordx4 v59, {sA}, s68 offen nt lds")
        if i < 7: a("s_add_u32 s68, s68, 10240")
    a("L_t_nowo:")
    a("s_barrier")
    a("s_cmp_ge_u32 s3, 4\ns_cbranch_scc1 L_t_now1")
    a("s_cmp_ge_u32 s2, 240\ns_cbranch_scc1 L_t_now1")
    srd(60, 28, 1966080)
    srd(64, 30, 1966080)
    a("s_lshl_b32 s12, s3, 11")
    for i in range(2):
        a(f"s_add_u32 m0, s12, {L_W1 + i*1024}\nbuffer_load_dwordx4 v60, {sB}, s69 offen nt lds")
        a(f"s_add_u32 m0, s12, {L_W1 + 8192 + i*1024}\nbuffer_load_dwordx4 v60, {sC}, s69 offen nt lds")
        if i < 1: a(f"s_add_u32 s69, s69, {4*3072}")
    a(f"s_cmp_lt_u32 s2, {S2_0}\ns_cbranch_scc1 L_t_now1")
    a("s_cmp_eq_u32 s101, 0\ns_cbranch_scc1 L_t_now1")
    srd(56, 32, 1966080)
    for i in range(5):
        a(f"s_add_u32 m0, s71, {L_WD + i*1024}\nbuffer_load_dwordx4 v62, {sA}, s70 offen nt lds")
        if i < 4: a("s_add_u32 s70, s70, 1024")
    a("L_t_now1:")
    a(f"s_cmp_eq_u32 s34, 1\ns_cbranch_scc1 L_wo")
    a("s_cmp_ge_u32 s2, 240\ns_cbranch_scc1 L_end")
    a("s_waitcnt vmcnt(0)\ns_barrier\ns_branch L_s1")

    a("L_wo:")
    a(f"""
    v_lshrrev_b32 v6, 2, v4
    v_and_b32 v7, 3, v4
    v_lshl_add_u32 v6, v5, 2, v6   ; 4g + r
    v_lshlrev_b32 v6, 7, v6
    v_lshl_add_u32 v6, v7, 3, v6
    v_add_u32 v6, s27, v6
    v_and_b32 v12, 7, v4           ; s + 2b
    v_lshrrev_b32 v7, 3, v4        ; hi
    v_mul_u32_u24 v9, {96*384}, v12
    v_lshl_add_u32 v8, v7, 6, v9
    v_lshl_add_u32 v8, v5, 4, v8   ; + hi*64 + g*16
    s_mul_i32 s11, s11, 384
    s_add_u32 s11, s11, {OPX}
    v_lshrrev_b32 v10, 1, v5
    v_lshlrev_b32 v10, 10, v10
    v_lshl_add_u32 v10, v4, 4, v10
    v_and_b32 v11, 1, v5
    v_lshl_add_u32 v10, v11, 3, v10
    s_lshl_b32 s13, s8, 11
    s_add_u32 s13, s13, s15
    v_add_u32 v10, s13, v10
    v_lshlrev_b32 v13, 2, v1
    s_lshl_b32 s13, s8, 8
    s_add_u32 s12, s13, s15
    v_add_u32 v14, s12, v13
    ; FA flag address: ksl = 2oc + (w4>>1); u = fsl*20 + ksl ; wv = ob/6 ; idx = (ob%6)*2 + (w4&1)
    s_lshl_b32 s36, s10, 1
    s_lshr_b32 s12, s8, 1
    s_add_u32 s36, s36, s12
    s_lshl_b32 s36, s36, 8
    s_mul_i32 s12, s9, 43
    s_lshr_b32 s12, s12, 8         ; ob/6
    s_mul_i32 s37, s12, {64 - 48}
    s_lshl_b32 s12, s9, 3
    s_add_u32 s37, s37, s12        ; wv*64 + (ob%6)*8
    s_and_b32 s12, s8, 1
    s_lshl_b32 s12, s12, 2
    s_add_u32 s37, s37, s12
    s_add_u32 s36, s36, s37
    s_add_u32 s36, s36, {FA}
    v_mul_u32_u24 v15, {20*256}, v1
    s_mul_i32 s10, s10, 24
    s_add_u32 s10, s10, s9
    s_lshl_b32 s10, s10, 10
    s_add_u32 s10, s10, s13
    s_add_u32 s10, s10, {AM}
    s_lshl_b32 s9, s35, 7
    s_lshl_b32 s12, s8, 5
    s_add_u32 s9, s9, s12
    s_add_u32 s9, s9, {FO}
    """)
    fpoll("L_wo_sp", "s9", 8, 8, 16, sleep=intv[0])
    a("L_wo_poll:")
    a(f"buffer_load_dwordx4 v[96:99], v8, {sWS}, s11 offen sc1")
    a(f"buffer_load_dwordx4 v[100:103], v8, {sWS}, s11 offen offset:128 sc1")
    a(f"buffer_load_dwordx4 v[104:107], v9, {sWS}, s11 offen offset:256 sc1")
    a("s_waitcnt vmcnt(3)")
    TS(13)
    for t in range(2):
        for nt in range(4):
            r = 64 + (t * 4 + nt) * 4
            a(f"ds_read_b64_tr_b16 v[{r}:{r+1}], v6 offset:{t*2048 + nt*32}")
            a(f"ds_read_b64_tr_b16 v[{r+2}:{r+3}], v6 offset:{t*2048 + nt*32 + 4096}")
    a("s_waitcnt vmcnt(0)")
    chk([99, 103, 107], 11, "L_wo_poll", sleep=intv[0])
    TS(3)
    a(f"""
    v_mov_b32_dpp v106, v104 quad_perm:[1,0,3,2] row_mask:0xf bank_mask:0xf
    v_mov_b32_dpp v107, v105 quad_perm:[1,0,3,2] row_mask:0xf bank_mask:0xf
    v_max_f32 v12, v104, v106
    v_sub_f32 v104, v104, v12
    v_sub_f32 v106, v106, v12
    v_mul_f32 v104, {hex(LOG2E)}, v104
    v_mul_f32 v106, {hex(LOG2E)}, v106
    v_exp_f32 v104, v104
    v_exp_f32 v106, v106
    """)
    unpack4(96); unpack4(100)
    a(f"""
    v_mul_f32 v105, v105, v104
    v_fmac_f32 v105, v107, v106
    v_rcp_f32 v105, v105
    s_nop 0
    v_mul_f32 v104, v104, v105
    """)
    for i in range(8):
        a(f"v_mul_f32 v{96+i}, v{96+i}, v104")
    for i in range(8):
        a(f"v_add_f32_dpp v{96+i}, v{96+i}, v{96+i} quad_perm:[1,0,3,2] row_mask:0xf bank_mask:0xf")
    for i in range(4):
        a(f"v_cvt_pk_bf16_f32 v{108+i}, v{96+2*i}, v{97+2*i}")
    a("s_waitcnt lgkmcnt(0)")
    for nt in range(4):
        for t in range(2):
            Dd = 20 + (nt * 2 + t) * 4
            rb = 64 + (t * 4 + nt) * 4
            a(f"v_mfma_f32_16x16x32_bf16 v[{Dd}:{Dd+3}], v[108:111], v[{rb}:{rb+3}], 0")
    for nt in range(4):
        Dd = 20 + nt * 8
        a(f"v_cndmask_b32 v{112+2*nt}, v{Dd}, v{Dd+4}, {mHI}")
        a(f"v_cndmask_b32 v{113+2*nt}, v{Dd+2}, v{Dd+6}, {mHI}")
        a(f"ds_write_b64 v10, v[{112+2*nt}:{113+2*nt}] offset:{nt*256}")
    a("s_waitcnt lgkmcnt(0)\ns_barrier")
    for i in range(8):
        a(f"ds_read_b32 v{20+i}, v14 offset:{i*1024}")
    a("s_waitcnt lgkmcnt(0)")
    a("""
    v_add_f32 v20, v20, v21
    v_add_f32 v22, v22, v23
    v_add_f32 v24, v24, v25
    v_add_f32 v26, v26, v27
    v_add_f32 v20, v20, v22
    v_add_f32 v24, v24, v26
    v_add_f32 v20, v20, v24
    """)
    quad_gather(20, 20)
    EX(0x11111111)
    a(f"buffer_store_dwordx4 v[20:23], v13, {sWS}, s10 offen sc1")
    EX(0xfff, 0)
    a(f"buffer_store_dword v23, v15, {sWS}, s36 offen sc1")
    EXALL()
    TS(10)
    a("s_cmp_ge_u32 s2, 240\ns_cbranch_scc1 L_end")

    a("L_s1:")
    a(f"""
    v_lshrrev_b32 v6, 2, v4         ; r / j2
    v_and_b32 v7, 3, v4             ; c / b
    v_lshl_add_u32 v16, v5, 3, v6   ; 8g + r
    v_lshlrev_b32 v16, 8, v16
    v_lshl_add_u32 v16, v7, 3, v16
    s_lshl_b32 s8, s3, 5
    s_add_u32 s8, s8, {L_W1}
    v_add_u32 v16, s8, v16
    ds_read_b64_tr_b16 v[64:65], v16
    ds_read_b64_tr_b16 v[66:67], v16 offset:1024
    ds_read_b64_tr_b16 v[68:69], v16 offset:8192
    ds_read_b64_tr_b16 v[70:71], v16 offset:9216
    v_and_b32 v17, 7, v4
    v_lshlrev_b32 v17, 6, v17
    v_lshl_add_u32 v17, v5, 4, v17
    v_add_u32 v17, {L_SA}, v17
    ds_read_b128 v[72:75], v17
    ; constants for lane (b=m&3, j2, g): offset b*128 + (8g + 2 j2)*4
    v_lshlrev_b32 v18, 7, v7
    v_lshl_add_u32 v18, v5, 5, v18
    v_lshl_add_u32 v18, v6, 3, v18
    v_add_u32 v19, {L_CC}, v18
    ds_read_b64 v[76:77], v19              ; ga
    ds_read_b64 v[78:79], v19 offset:512   ; cb1
    ds_read_b64 v[80:81], v19 offset:1024  ; x
    v_add_u32 v19, {L_AR}, v18
    s_lshl_b32 s8, s99, 3
    s_add_u32 s8, s8, s3
    s_mul_i32 s8, s8, 20
    s_add_u32 s8, s8, s100
    s_lshl_b32 s9, s8, 10
    s_add_u32 s9, s9, {CMS}
    s_lshl_b32 s10, s8, 9
    s_add_u32 s10, s10, {CM}
    s_lshl_b32 s11, s8, 6
    s_add_u32 s11, s11, {CST}
    v_lshlrev_b32 v8, 4, v1
    s_waitcnt lgkmcnt(3)
    v_mfma_f32_16x16x32_bf16 v[24:27], v[72:75], v[64:67], 0
    v_mfma_f32_16x16x32_bf16 v[28:31], v[72:75], v[68:71], 0
    s_lshr_b32 s12, s100, 1
    s_mul_i32 s12, s12, 24
    s_mul_i32 s13, s3, 6
    s_add_u32 s12, s12, s13
    s_lshl_b32 s12, s12, 10
    s_and_b32 s13, s100, 1
    s_lshl_b32 s13, s13, 9
    s_add_u32 s12, s12, s13
    s_add_u32 s12, s12, {AM}
    s_add_u32 s13, s12, 4096
    v_lshrrev_b32 v9, 5, v1
    v_and_b32 v10, 31, v1
    v_lshlrev_b32 v11, 10, v9
    v_lshl_add_u32 v11, v10, 4, v11
    v_lshlrev_b32 v9, 9, v9
    v_lshl_add_u32 v9, v10, 2, v9
    s_lshl_b32 s14, s3, 10
    s_add_u32 s14, s14, {L_AR}
    v_add_u32 v9, s14, v9
    """)
    for v in range(4):
        a(f"v_cndmask_b32 v{24+v}, v{24+v}, v{28+v}, {mHI}")
    pack4(24, 24, 25, 26, 27)
    if not nocms: a(f"buffer_store_dwordx4 v[24:27], v8, {sWS}, s9 offen sc1")
    a("s_cmp_lt_u32 s3, 4\ns_cbranch_scc1 L_s1_g")
    a(f"s_cmp_lt_u32 s2, {S2_0}\ns_cbranch_scc1 L_s1_b3")
    a("s_cmp_eq_u32 s101, 1\ns_cbranch_scc1 L_s1_b3")
    srd(56, 32, 1966080)
    for i in range(5):
        a(f"s_add_u32 m0, s71, {L_WD + i*1024}\nbuffer_load_dwordx4 v62, {sA}, s70 offen nt lds")
        if i < 4: a("s_add_u32 s70, s70, 1024")
    a("s_branch L_s1_b3")
    a("L_s1_g:")
    a(f"s_waitcnt lgkmcnt(0)\ns_lshl_b32 s36, s2, 8\ns_lshl_b32 s37, s3, 6\ns_add_u32 s36, s36, s37\ns_add_u32 s36, s36, {FA}")
    fpoll("L_s1_sp", "s36", 16, 12, 16, sleep=intv[1])
    a("L_s1_poll:")
    a(f"buffer_load_dwordx4 v[96:99], v11, {sWS}, s12 offen sc1")
    a(f"buffer_load_dwordx4 v[100:103], v11, {sWS}, s12 offen offset:2048 sc1")
    a(f"buffer_load_dwordx4 v[104:107], v11, {sWS}, s13 offen sc1")
    a("s_waitcnt vmcnt(0)")
    chk([99, 103, 107], 12, "L_s1_poll", sleep=intv[1])
    TS(9)
    unpack4(96); unpack4(100); unpack4(104)
    for v in range(4):
        a(f"v_add_f32 v{96+v}, v{96+v}, v{100+v}")
    for v in range(4):
        a(f"v_add_f32 v{96+v}, v{96+v}, v{104+v}")
    for v in range(4):
        a(f"ds_write_b32 v9, v{96+v} offset:{v*128}")
    a("L_s1_b3:")
    a("s_waitcnt lgkmcnt(0)\ns_barrier")
    for i in range(8):
        a(f"ds_read_b64 v[{96+2*i}:{97+2*i}], v19 offset:{i*512}")
    a("s_waitcnt lgkmcnt(0)")
    for (x, y) in ((0, 1), (2, 3), (4, 5), (6, 7), (0, 2), (4, 6), (0, 4)):
        a(f"v_add_f32 v{96+2*x}, v{96+2*x}, v{96+2*y}\nv_add_f32 v{97+2*x}, v{97+2*x}, v{97+2*y}")
    rnd2(96, 97, 12)
    a("v_mul_f32 v96, v76, v96\nv_mul_f32 v97, v77, v97")
    rnd2(96, 97, 12)
    a("v_add_f32 v96, v80, v96\nv_add_f32 v97, v81, v97")
    rnd2(96, 97, 12)
    a(f"""
    v_mul_f32 v98, v96, v78
    v_mul_f32 v99, v97, v79
    v_cvt_pk_bf16_f32 v100, v98, v99
    v_add_f32 v12, v96, v97
    v_mov_b32_dpp v101, v100 row_ror:12 row_mask:0xf bank_mask:0xf
    v_mov_b32_dpp v102, v100 row_ror:8 row_mask:0xf bank_mask:0xf
    v_mov_b32_dpp v103, v100 row_ror:4 row_mask:0xf bank_mask:0xf
    v_mfma_f32_16x16x32_bf16 v[24:27], v[100:103], v[64:67], 0
    v_mfma_f32_16x16x32_bf16 v[28:31], v[100:103], v[68:71], 0
    """)
    ror(12, 4); ror(12, 8); xrow_sum(12, 13)
    pack4(24, 24, 25, 26, 27)
    pack4(28, 28, 29, 30, 31)
    EX(0xffff, 0)
    a(f"buffer_store_dwordx4 v[24:27], v8, {sWS}, s10 offen sc1")
    a(f"buffer_store_dwordx4 v[28:31], v8, {sWS}, s10 offen offset:256 sc1")
    EXALL()
    a(f"""
    v_mul_f32 v12, 0x3d000000, v12       ; mean32
    v_sub_f32 v14, v96, v12
    v_sub_f32 v15, v97, v12
    v_mul_f32 v13, v14, v14
    v_fmac_f32 v13, v15, v15
    """)
    ror(13, 4); ror(13, 8); xrow_sum(13, 14)
    a(f"v_mov_b32 v14, 0\nv_mov_b32 v15, {TAG}")
    EX(0xf, 0)
    a(f"buffer_store_dwordx4 v[12:15], v8, {sWS}, s11 offen sc1")
    EXALL()
    TS(14)
    a(f"s_cmp_ge_u32 s2, {S2_0}\ns_cbranch_scc1 L_s2")
    a(f"s_cmp_ge_u32 s2, {NRED}\ns_cbranch_scc1 L_end")
    a(f"""
    v_add_u32 v19, {L_X1}, v18
    ds_write_b64 v19, v[96:97]
    v_and_b32 v6, 7, v1            ; n8
    v_bfe_u32 v7, v1, 3, 2         ; b
    v_lshlrev_b32 v9, 7, v7
    v_lshl_add_u32 v9, v6, 2, v9
    s_lshl_b32 s8, s99, 5
    v_add_u32 v9, s8, v9           ; b*128 + (8 fsl + n8)*4
    v_add_u32 v10, {L_X1}, v9
    v_add_u32 v9, {L_CC + 1536}, v9
    s_waitcnt lgkmcnt(0)
    ds_read_b32 v40, v10           ; x1
    ds_read_b32 v41, v9            ; gb
    s_lshl_b32 s9, s100, 2
    s_add_u32 s9, s9, s99          ; r
    s_mul_i32 s11, s9, {96*128}
    s_mul_i32 s12, s3, {12*128}
    s_add_u32 s11, s11, s12
    s_add_u32 s11, s11, {EM}
    v_mul_u32_u24 v9, 1280, v7
    v_lshl_add_u32 v9, v6, 1, v9
    s_lshl_b32 s13, s9, 4
    v_and_b32 v14, 31, v1
    v_lshlrev_b32 v14, 4, v14
    v_lshlrev_b32 v15, 7, v5
    v_lshl_add_u32 v15, v6, 4, v15
    s_lshl_b32 s12, s3, 9
    s_add_u32 s12, s12, {L_WR}
    v_add_u32 v15, s12, v15
    v_lshlrev_b32 v16, 4, v6
    v_lshl_add_u32 v16, v7, 2, v16
    v_lshrrev_b32 v17, 5, v1
    v_lshl_add_u32 v16, v17, 11, v16
    v_add_u32 v16, {L_WR}, v16
    s_lshl_b32 s10, s9, 9
    s_lshl_b32 s12, s3, 6
    s_add_u32 s10, s10, s12
    s_add_u32 s10, s10, {FE}
    """)
    srd(56, 38, 5120)
    a(f"""
    {'s_sleep %d' % pre[3] if pre[3] else ''}
    s_waitcnt lgkmcnt(0)
    """)
    fpoll("L_e_sp0", "s10", 16, 12, 16, sleep=intv[3])
    a(f"""
    L_e_poll:
    buffer_load_dwordx4 v[64:67], v8, {sWS}, s11 offen sc1
    buffer_load_dwordx4 v[68:71], v14, {sWS}, s11 offen offset:1024 sc1
    s_waitcnt vmcnt(0)
    """)
    chk([67, 71], 11, "L_e_poll", sleep=intv[3])
    TS(11)
    unpack4(64); unpack4(68)
    EX(0xffffffff, 0)
    for v in range(4): a(f"v_add_f32 v{64+v}, v{64+v}, v{68+v}")
    EXALL()
    for v in range(4): ror(64 + v, 8)
    a(f"""
    ds_write_b128 v15, v[64:67]
    s_waitcnt lgkmcnt(0)
    s_barrier
    s_cmp_eq_u32 s3, 0
    s_cbranch_scc0 L_end
    """)
    for i in range(16):
        a(f"ds_read_b32 v{64+i}, v16 offset:{i*128}")
    a("s_waitcnt lgkmcnt(0)")
    n = 16
    while n > 1:
        h = n // 2
        for i in range(h): a(f"v_add_f32 v{64+i}, v{64+i}, v{64+h+i}")
        n = h
    a("v_mov_b32 v13, v64\nv_permlane32_swap_b32 v13, v64\nv_add_f32 v13, v13, v64")
    rnd1(13)
    a("s_waitcnt lgkmcnt(0)\nv_mul_f32 v13, v41, v13")
    rnd1(13)
    a(f"""
    v_add_f32 v13, v40, v13
    v_cvt_pk_bf16_f32 v13, v13, v13
    """)
    EX(0xffffffff, 0)
    a(f"buffer_store_short v13, v9, {sA}, s13 offen")
    EXALL()
    TS(12)
    a(f"""
    s_cmp_eq_u32 s2, 0
    s_cbranch_scc0 L_end
    v_mov_b32 v8, {TAG}
    """)
    EX(1, 0)
    a(f"buffer_store_dword v8, v1, {sWS}, 0 offen sc1")
    EXALL()
    a("s_branch L_end")

    a("L_s2:")
    a(f"""
    s_sub_u32 s8, s2, {S2_0}         ; fs
    s_mul_i32 s9, s8, 20
    v_lshl_add_u32 v17, v5, 2, v6    ; 4g + r
    v_mul_u32_u24 v17, 1280, v17
    v_lshl_add_u32 v17, v7, 3, v17
    s_mul_i32 s11, s3, 160
    s_add_u32 s11, s11, {L_WD}
    v_add_u32 v17, s11, v17
    v_lshlrev_b32 v12, 2, v1
    v_add_u32 v12, {L_CR}, v12
    v_and_b32 v18, 3, v1
    v_lshlrev_b32 v18, 3, v18
    v_add_u32 v18, {L_SS}, v18       ; stats addr
    ; EM store addr: tile t=5w+i : r = 2t + (n>>3): (r*96 + fs)*128 + (n&7)*16
    v_lshrrev_b32 v13, 3, v4
    v_mul_u32_u24 v13, {96*128}, v13
    v_and_b32 v14, 7, v4
    v_lshl_add_u32 v13, v14, 4, v13
    s_mul_i32 s33, s3, {10*96*128}
    s_lshl_b32 s13, s8, 7
    s_add_u32 s33, s33, s13
    s_add_u32 s33, s33, {EM}
    s_mul_i32 s13, s8, 43
    s_lshr_b32 s13, s13, 9           ; fs/12
    s_mul_i32 s32, s13, {64 - 48}
    s_lshl_b32 s13, s8, 2
    s_add_u32 s32, s32, s13          ; (fs/12)*64 + (fs%12)*4
    s_mul_i32 s13, s3, 5120
    s_add_u32 s32, s32, s13
    s_add_u32 s32, s32, {FE}
    v_lshlrev_b32 v16, 9, v1
    s_cmp_ge_u32 s3, 6
    s_cbranch_scc1 L_s2_static
    s_cmp_eq_u32 s3, 5
    s_cbranch_scc1 L_s2_stats
    s_lshl_b32 s10, s3, 2
    s_add_u32 s10, s10, s9
    s_lshl_b32 s10, s10, 9
    s_add_u32 s10, s10, {CM}
    s_lshl_b32 s11, s3, 9
    s_add_u32 s11, s11, {L_CR}
    v_add_u32 v9, s11, v8
    {'s_sleep %d' % pre[2] if pre[2] else ''}
    L_s2_poll:
    buffer_load_dwordx4 v[96:99], v8, {sWS}, s10 offen sc1
    buffer_load_dwordx4 v[100:103], v8, {sWS}, s10 offen offset:1024 sc1
    s_waitcnt vmcnt(0)
    """)
    chk([99, 103], 10, "L_s2_poll", sleep=intv[2])
    TS(11)
    unpack4(96); unpack4(100)
    for v in range(4): a(f"v_add_f32 v{96+v}, v{96+v}, v{100+v}")
    for v in range(4): a(f"v_mov_b32 v{100+v}, v{96+v}")
    for v in range(4): a(f"v_permlane32_swap_b32 v{96+v}, v{100+v}")
    for v in range(4): a(f"v_add_f32 v{96+v}, v{96+v}, v{100+v}")
    EX(0xffffffff, 0)
    a("ds_write_b128 v9, v[96:99]")
    EXALL()
    a("s_branch L_s2_b4")
    a("L_s2_static:")
    if nocms: a("s_branch L_s2_b4")
    a(f"""
    s_sub_u32 s10, s3, 6
    s_mul_i32 s11, s10, 10
    s_add_u32 s11, s11, s9
    s_lshl_b32 s11, s11, 10
    s_add_u32 s11, s11, {CMS}
    s_lshl_b32 s10, s10, 10
    s_add_u32 s10, s10, {L_CR + 2560}
    v_add_u32 v9, s10, v8
    L_s2_spoll:
    s_mov_b32 s12, s11
    """)
    for i in range(10):
        a(f"buffer_load_dwordx4 v[{96+4*i}:{99+4*i}], v8, {sWS}, s12 offen offset:{(i%4)*1024} sc1")
        if i % 4 == 3: a("s_add_u32 s12, s12, 4096")
    a("s_waitcnt vmcnt(0)")
    chk([99 + 4 * i for i in range(10)], 10, "L_s2_spoll", sleep=1)
    TS(11)
    for i in range(10): unpack4(96 + 4 * i)
    for i in range(1, 10):
        for v in range(4): a(f"v_add_f32 v{96+v}, v{96+v}, v{96+4*i+v}")
    a("ds_write_b128 v9, v[96:99]")
    a("s_branch L_s2_b4")
    a("L_s2_stats:")
    a(f"""
    s_lshl_b32 s11, s9, 6
    s_add_u32 s11, s11, {CST}
    v_and_b32 v9, 15, v1
    v_lshlrev_b32 v9, 4, v9
    {'s_sleep %d' % pre[2] if pre[2] else ''}
    s_mov_b32 s16, 0xffff0000
    s_mov_b32 s17, -1
    L_s2_tpoll:
    buffer_load_dwordx4 v[96:99], v8, {sWS}, s11 offen sc1
    buffer_load_dwordx4 v[100:103], v9, {sWS}, s11 offen offset:1024 sc1
    s_waitcnt vmcnt(0)
    """)
    chk([99, 103], 10, "L_s2_tpoll", sleep=intv[2])
    TS(11)
    a(f"""
    v_cndmask_b32 v14, v100, 0, s[16:17]
    v_add_f32 v14, v14, v96
    """)
    ror(14, 4); ror(14, 8); xrow_sum(14, 15)
    a(f"""
    v_mul_f32 v14, 0x3d4ccccd, v14      ; /20 -> mean
    v_sub_f32 v96, v96, v14
    v_sub_f32 v100, v100, v14
    v_mul_f32 v96, v96, v96
    v_mul_f32 v100, v100, v100
    v_fmac_f32 v97, 0x42000000, v96
    v_fmac_f32 v101, 0x42000000, v100
    v_cndmask_b32 v15, v101, 0, s[16:17]
    v_add_f32 v15, v15, v97
    """)
    ror(15, 4); ror(15, 8); xrow_sum(15, 19)
    a(f"v_mul_f32 v15, {hex(0x3ACCCCCD)}, v15")
    rnd2(14, 15, 19)
    a(f"v_add_f32 v15, {hex(0x3727C5AC)}, v15")
    rnd1(15)
    a("v_sqrt_f32 v15, v15")
    rnd1(15)
    a("v_rcp_f32 v15, v15")
    a("s_nop 0\nds_write_b64 v18, v[14:15]")
    a("L_s2_b4:")
    a("s_waitcnt lgkmcnt(0)\ns_barrier")
    for i in range(5):
        a(f"ds_read_b32 v{24+i}, v12 offset:{i*512}")
        a(f"ds_read_b32 v{32+i}, v12 offset:{i*512+256}")
    rd = [f"ds_read_b32 v{40+4*j+ty}, v12 offset:{2560 + j*1024 + ty*256}" for j in range(2) for ty in range(4)] + ["ds_read_b64 v[14:15], v18"]
    for x in rd[:5]: a(x)
    a("s_waitcnt lgkmcnt(5)")
    for x in rd[5:]: a(x)
    for i in range(5): a(f"ds_read_b64_tr_b16 v[{84+2*i}:{85+2*i}], v17 offset:{i*32}")
    a("""
    v_add_f32 v24, v24, v25
    v_add_f32 v26, v26, v27
    v_add_f32 v32, v32, v33
    v_add_f32 v34, v34, v35
    v_add_f32 v24, v24, v26
    v_add_f32 v32, v32, v34
    v_add_f32 v24, v24, v28
    v_add_f32 v32, v32, v36
    s_waitcnt lgkmcnt(5)
    v_add_f32 v40, v40, v44
    v_add_f32 v41, v41, v45
    v_add_f32 v42, v42, v46
    v_add_f32 v43, v43, v47
    v_fma_f32 v24, -v14, v40, v24
    v_fma_f32 v32, -v14, v42, v32
    v_fma_f32 v24, v24, v15, v41
    v_fma_f32 v32, v32, v15, v43
    """)
    rnd2(24, 32, 19)
    a(f"""
    v_cmp_lt_f32 vcc, 0, v24
    v_cndmask_b32 v25, 0, 1.0, vcc
    v_mul_f32 v24, v24, v25
    v_mul_f32 v24, v24, v32
    v_mov_b32_dpp v25, v24 row_ror:12 row_mask:0xf bank_mask:0xf
    v_mov_b32_dpp v26, v24 row_ror:8 row_mask:0xf bank_mask:0xf
    v_mov_b32_dpp v27, v24 row_ror:4 row_mask:0xf bank_mask:0xf
    v_cvt_pk_bf16_f32 v28, v24, v25
    v_cvt_pk_bf16_f32 v29, v26, v27
    s_waitcnt lgkmcnt(0)
    """)
    for i in range(5):
        a(f"v_mfma_f32_16x16x16_bf16 v[{32+4*i}:{35+4*i}], v[28:29], v[{84+2*i}:{85+2*i}], 0")
    EX(0xffff, 0)
    for i in range(5):
        pack4(32 + 4 * i, 32 + 4 * i, 33 + 4 * i, 34 + 4 * i, 35 + 4 * i)
        a(f"buffer_store_dwordx4 v[{32+4*i}:{35+4*i}], v13, {sWS}, s33 offen sc1")
        if i < 4: a(f"s_add_u32 s33, s33, {2*96*128}")
    EX(0x3ff, 0)
    a(f"buffer_store_dword v35, v16, {sWS}, s32 offen sc1")
    EXALL()
    TS(12)

    a("L_end:")
    if ts == 3:
        TS(15)
        srd(68, 40, 256)
        a(f"""
        v_readlane_b32 s8, v63, 0
        s_not_b32 s8, s8
        s_nop 3
        v_writelane_b32 v63, s8, 3
        v_lshlrev_b32 v6, 2, v1
        s_mov_b64 exec, 0xffff
        buffer_atomic_umax v63, v6, {sTS}, 0 offen
        """)
    elif ts:
        TS(15)
        srd(68, 42, 0x4000000)
        a(f"""
        s_lshl_b32 s8, s2, 3
        s_add_u32 s8, s8, s3
        s_lshl_b32 s8, s8, 6
        s_add_u32 s8, s8, {TSOFF}
        v_lshlrev_b32 v6, 2, v1
        s_mov_b64 exec, 0xffff
        buffer_store_dword v63, v6, {sTS}, s8 offen
        """)
    a("L_exit:\ns_endpgm")
    a.footer(256, 102)
    nn = a.write(out)
    return nn

if __name__ == "__main__":
    K = dict(NV1=5, D=8, D1=3, DL=3, NWQ0=2, NL=4, pre=(0, 0, 15, 24), intv=(0, 1, 0, 0))
    gen("k27.s", N2=60, **K)
    gen("m_60.s", ts=1, N2=60, **K)
    gen("m_40.s", ts=1, N2=40, **K)
```

```python
import sys, copy
from asmlib import *

EPOCH = 0x0
FLAG1 = 0x1000
MODP = 0x10000
QP   = 0x50000
OPX  = 0x140000
AM   = 0x188000
CM   = 0x1C4000
CST  = 0x2B4000
CMS  = 0x2E0000
EM   = 0x4C0000
F1 = 0x1000
F2 = 0x5B0000
FO = 0x5B8000
FE = 0x5C0000
PG = 0x5CC000
FA = 0x5D0000
WSEND = 0x5E0000
TSOFF = 0x2000000
L_WM = 0
L_WQ = 20480
L_WO = 0
L_W1 = 32768
L_WD = 53248
L_HK = 73728
L_HV = 98304
L_RED = 122880
L_WR = 135168
L_AR = 143360
L_CR = 147456
L_MISC = 155648
L_Q = L_MISC
L_MLW = L_MISC + 512
L_SS = L_MISC + 640
L_CNT = L_MISC + 704
L_HB = L_MISC + 1024
L_CC = L_MISC + 2048
L_SA = L_MISC + 4096
L_X1 = L_MISC + 4608
L_WOB = 73728
L_WRB = 106496
L_DUMMY = L_MISC + 5120
LDS_TOTAL = 163840
LOG2E = 0x3FB8AA3B
SCALE = 0x3D93CD3A
S2_0 = 144
NRED = 80
SPIN = 100000
TAG = "s85"

def gen(out, NV1=2, D=5, D1=3, N1=24, NWQ0=0, NL=2, DL=4, N2=60, abl=(), dly=(0,0), rot=1, prio=1, wdpos=0, w1d=0, ef=(1,2,2,1,1), TKT=7, early=0, late=1, S=0, warm=0, noprefix=False, ts=False, comments=(), nocms=False, hpre=(0,), pre=(0,0,0,8), intv=(0,0,0,0)):
    a = Asm()
    a.header(256, 512, LDS_TOTAL, comments)
    sK, sV, sWS, sA, sB, sC, sTS = "s[44:47]", "s[48:51]", "s[52:55]", "s[56:59]", "s[60:63]", "s[64:67]", "s[68:71]"
    mODD, mNHI, mQ1, mQ2, mQ3, mRED, mHI = "s[72:73]", "s[74:75]", "s[76:77]", "s[78:79]", "s[80:81]", "s[82:83]", "s[92:93]"
    P0, P1, P2, U0, U1 = "s94", "s95", "s96", "s97", "s98"
    def srd(base, ptr, size):
        a(f"s_mov_b32 s{base}, s{ptr}\ns_mov_b32 s{base+1}, s{ptr+1}\ns_mov_b32 s{base+2}, {size}\ns_mov_b32 s{base+3}, 0x20000")
    def TS2(k):
        if ts == 2:
            a(f"s_memrealtime s[86:87]\ns_waitcnt lgkmcnt(0)\nv_writelane_b32 v63, s86, {k}")
    def TS5(k):
        if ts == 5:
            a(f"s_memrealtime s[86:87]\ns_waitcnt lgkmcnt(0)\nv_writelane_b32 v63, s86, {k}")
    def TS(k):
        if ts == 5 and k in (1, 2, 4, 5, 6, 13): return
        if ts == 2 and 8 <= k <= 14: return
        if ts == 4: return
        if ts:
            a(f"s_memrealtime s[86:87]\ns_waitcnt lgkmcnt(0)\nv_writelane_b32 v63, s86, {k}")
    def xrow_sum(r, t, op="v_add_f32"):
        a(f"v_mov_b32 v{t}, v{r}\nv_permlane16_swap_b32 v{r}, v{t}\n{op} v{r}, v{r}, v{t}")
        a(f"v_mov_b32 v{t}, v{r}\nv_permlane32_swap_b32 v{r}, v{t}\n{op} v{r}, v{r}, v{t}")
    def ror(r, n, op="v_add_f32"):
        a(f"{op}_dpp v{r}, v{r}, v{r} row_ror:{n} row_mask:0xf bank_mask:0xf")
    def red2(r0, r1, t0, t1):
        for n in (4, 8):
            ror(r0, n); ror(r1, n)
        for sw in ("v_permlane16_swap_b32", "v_permlane32_swap_b32"):
            a(f"v_mov_b32 v{t0}, v{r0}\nv_mov_b32 v{t1}, v{r1}\n{sw} v{r0}, v{t0}\n{sw} v{r1}, v{t1}\nv_add_f32 v{r0}, v{r0}, v{t0}\nv_add_f32 v{r1}, v{r1}, v{t1}")
    def rnd2(x, y, p):
        a(f"v_cvt_pk_bf16_f32 v{p}, v{x}, v{y}\nv_lshlrev_b32 v{x}, 16, v{p}\nv_and_b32 v{y}, 0xffff0000, v{p}")
    def rnd1(x):
        a(f"v_cvt_pk_bf16_f32 v{x}, v{x}, v{x}\nv_and_b32 v{x}, 0xffff0000, v{x}")
    def chk(tagregs, t, retry, sleep=0):
        regs = list(tagregs)
        a(f"v_xor_b32 v{t}, {TAG}, v{regs[0]}")
        for r in regs[1:]:
            a(f"v_xor_b32 v{t+1}, {TAG}, v{r}\nv_or_b32 v{t}, v{t}, v{t+1}")
        lab = a.label("L_ok")
        slot = {"L_h_poll1": 1, "L_h_poll2": 2, "L_h_poll3": 3, "L_wo_poll": 4, "L_s1_poll": 5, "L_s2_poll": 6, "L_s2_spoll": 7, "L_s2_tpoll": 8, "L_e_poll": 9}[retry]
        cnt = f"v_readlane_b32 s86, v63, {slot}\ns_nop 3\ns_add_u32 s86, s86, 1\ns_nop 3\nv_writelane_b32 v63, s86, {slot}" if ts == 4 else ""
        a(f"""
        v_cmp_ne_u32 vcc, 0, v{t}
        s_cbranch_vccz {lab}
        {cnt}
        {'s_sleep %d' % sleep if sleep else ''}
        s_sub_u32 s84, s84, 1
        s_cmp_lg_u32 s84, 0
        s_cbranch_scc1 {retry}
        {lab}:
        """)
    def fpoll(name, off_sreg, width, n, base, sleep=0, tag=TAG):
        a(f"""
        s_add_u32 s14, s42, {off_sreg}
        s_addc_u32 s15, s43, 0
        {name}:
        s_load_dwordx{width} s[{base}:{base+width-1}], s[14:15], 0 glc
        s_waitcnt lgkmcnt(0)
        s_and_b64 vcc, s[{base}:{base+1}], s[{base+2}:{base+3}]
        s_or_b64 s[{base}:{base+1}], s[{base}:{base+1}], s[{base+2}:{base+3}]
        """)
        assert n % 2 == 0
        for i in range(4, n, 2):
            a(f"s_and_b64 vcc, vcc, s[{base+i}:{base+i+1}]\ns_or_b64 s[{base}:{base+1}], s[{base}:{base+1}], s[{base+i}:{base+i+1}]")
        a(f"""
        s_and_b32 vcc_lo, vcc_lo, vcc_hi
        s_or_b32 s{base}, s{base}, s{base+1}
        s_xor_b32 vcc_lo, vcc_lo, {tag}
        s_xor_b32 s{base}, s{base}, {tag}
        s_or_b32 s{base}, s{base}, vcc_lo
        s_cmp_eq_u32 s{base}, 0
        s_cbranch_scc1 {name}_ok
        {'s_sleep %d' % sleep if sleep else ''}
        s_sub_u32 s84, s84, 1
        s_cmp_lg_u32 s84, 0
        s_cbranch_scc1 {name}
        {name}_ok:
        """)
    def pack4(d, v0, v1, v2, v3):
        a(f"v_perm_b32 v{d}, v{v0}, v{v3}, {P0}")
        a(f"v_perm_b32 v{d+1}, v{v1}, v{v3}, {P1}")
        a(f"v_perm_b32 v{d+2}, v{v2}, v{v3}, {P2}")
        a(f"v_mov_b32 v{d+3}, {TAG}")
    def unpack4(d):
        a(f"v_perm_b32 v{d+3}, v{d}, v{d+1}, {U0}")
        a(f"v_perm_b32 v{d+3}, v{d+3}, v{d+2}, {U1}")
    def quad_gather(d, src):
        a(f"v_mov_b32_dpp v{d+1}, v{src} quad_perm:[1,1,1,1] row_mask:0xf bank_mask:0xf")
        a(f"v_mov_b32_dpp v{d+2}, v{src} quad_perm:[2,2,2,2] row_mask:0xf bank_mask:0xf")
        a(f"v_mov_b32_dpp v{d+3}, v{src} quad_perm:[3,3,3,3] row_mask:0xf bank_mask:0xf")
        pack4(d, src, d + 1, d + 2, d + 3)
    def sel_q4(dsts, sets):
        for v in range(len(dsts)):
            a(f"v_cndmask_b32 v{dsts[v]}, v{sets[0][v]}, v{sets[1][v]}, {mQ1}")
            a(f"v_cndmask_b32 v{dsts[v]}, v{dsts[v]}, v{sets[2][v]}, {mQ2}")
            a(f"v_cndmask_b32 v{dsts[v]}, v{dsts[v]}, v{sets[3][v]}, {mQ3}")
    def xsum4(base, tb):
        for v in range(4): a(f"v_mov_b32 v{tb+v}, v{base+v}")
        for v in range(4): a(f"v_permlane16_swap_b32 v{base+v}, v{tb+v}")
        for v in range(4): a(f"v_add_f32 v{base+v}, v{base+v}, v{tb+v}")
        for v in range(4): a(f"v_mov_b32 v{tb+v}, v{base+v}")
        for v in range(4): a(f"v_permlane32_swap_b32 v{base+v}, v{tb+v}")
        for v in range(4): a(f"v_add_f32 v{base+v}, v{base+v}, v{tb+v}")
    def EX(lo, hi=None):
        hi = lo if hi is None else hi
        a(f"s_mov_b32 exec_lo, {hex(lo)}\ns_mov_b32 exec_hi, {hex(hi)}")
    def EXALL(): a("s_mov_b64 exec, -1")

    a(f"""
    s_cmp_ge_u32 s2, 256
    s_cbranch_scc1 L_exit
    s_load_dwordx16 s[16:31], s[0:1], 0
    s_load_dwordx8 s[32:39], s[0:1], 64
    s_load_dwordx4 s[40:43], s[0:1], 96
    v_and_b32 v1, 63, v0
    v_lshrrev_b32 v6, 6, v0
    v_readfirstlane_b32 s3, v6
    v_and_b32 v4, 15, v1
    v_lshrrev_b32 v5, 4, v1
    s_and_b32 s8, s2, 7
    s_lshr_b32 s9, s2, 3
    s_and_b32 s10, s9, 3
    s_lshl_b32 s4, s8, 2
    s_add_u32 s4, s4, s10          ; head
    s_lshr_b32 s5, s9, 2
    s_and_b32 s5, s5, 3            ; b
    s_lshr_b32 s6, s9, 4           ; split
    s_lshl_b32 s7, s5, 5
    s_add_u32 s7, s7, s4
    s_lshl_b32 s7, s7, 12
    s_add_u32 s7, s7, 3072
    s_lshl_b32 s10, s6, 9
    s_add_u32 s7, s7, s10
    s_lshl_b32 s10, s3, {3 if rot else 6}
    s_add_u32 s7, s7, s10
    s_mul_i32 s7, s7, 384
    s_mul_i32 s101, s8, 30
    s_add_u32 s101, s101, s9
    s_mul_i32 s10, s8, 10
    s_add_u32 s10, s10, s9
    s_sub_u32 s10, s10, 20
    s_sub_u32 s11, s101, 80
    s_cmp_lt_u32 s8, 4
    s_cselect_b32 s10, s10, s11
    s_cselect_b32 s12, 20, 0
    s_mul_i32 s88, s10, 1639
    s_lshr_b32 s88, s88, 16        ; j/40
    s_mul_i32 s11, s88, 40
    s_sub_u32 s89, s10, s11
    s_add_u32 s89, s89, 20
    s_cmp_lt_u32 s9, s12
    s_cselect_b32 s88, s8, s88     ; ks
    s_cselect_b32 s89, s9, s89     ; cbk
    s_mul_i32 s90, s101, 1366
    s_lshr_b32 s90, s90, 16        ; kq = u/48
    s_mul_i32 s10, s90, 48
    s_sub_u32 s91, s101, s10       ; qb
    s_mul_i32 s99, s2, 3277
    s_lshr_b32 s99, s99, 16        ; fsl = u/20
    s_mul_i32 s10, s99, 20
    s_sub_u32 s100, s2, s10        ; ksl
    v_lshrrev_b32 v6, 1, v4
    v_mul_u32_u24 v6, 384, v6
    v_and_b32 v7, 1, v4
    v_lshl_add_u32 v7, v7, 2, v5
    v_lshl_add_u32 v2, v7, 4, v6
    v_lshrrev_b32 v8, 3, v1
    v_mul_u32_u24 v6, 384, v8
    v_and_b32 v7, 7, v1
    v_lshl_add_u32 v3, v7, 4, v6
    v_mul_u32_u24 v8, 7680, v8
    v_lshl_add_u32 v8, v7, 4, v8
    v_mul_u32_u24 v9, 12288, v5
    v_lshl_add_u32 v61, v4, 4, v9
    s_mov_b32 s72, 0xaaaaaaaa
    s_mov_b32 s73, 0xaaaaaaaa
    s_mov_b32 s74, 0xff00ff00
    s_mov_b32 s75, 0xff00ff00
    s_mov_b32 s76, 0xffff0000
    s_mov_b32 s77, 0
    s_mov_b32 s78, 0
    s_mov_b32 s79, 0x0000ffff
    s_mov_b32 s80, 0
    s_mov_b32 s81, 0xffff0000
    s_mov_b32 s82, 0x00ff00ff
    s_mov_b32 s83, 0xff00ff00
    s_mov_b32 s92, 0
    s_mov_b32 s93, -1
    s_mov_b32 s84, {SPIN}
    s_mov_b32 {P0}, 0x07060503
    s_mov_b32 {P1}, 0x07060502
    s_mov_b32 {P2}, 0x07060501
    s_mov_b32 {U0}, 0x04000c0c
    s_mov_b32 {U1}, 0x0706000c
    s_mul_i32 s11, s88, 160
    s_lshl_b32 s12, s3, 3
    s_add_u32 s11, s11, s12
    s_mul_i32 s11, s11, 7680
    s_lshl_b32 s12, s89, 7
    s_add_u32 s11, s11, s12
    s_lshl_b32 s12, s3, 10
    s_lshl_b32 s13, s90, 7
    s_lshl_b32 s14, s3, 4
    s_add_u32 s13, s13, s14
    s_mul_i32 s13, s13, 12288
    s_lshl_b32 s14, s91, 8
    s_add_u32 s13, s13, s14
    s_lshl_b32 s14, s3, 12
    s_add_u32 s14, s14, {L_WQ}
    s_waitcnt lgkmcnt(0)
    s_load_dword {TAG}, s[42:43], {EPOCH}
    """)
    srd(56, 36, 4915200)
    srd(60, 22, 7864320)
    srd(52, 42, WSEND)
    srd(44, 18, 201326592)
    srd(48, 20, 201326592)
    if ts:
        a("v_mov_b32 v63, 0")
    TS(0)
    a("s_cmp_eq_u32 s3, 0\ns_cbranch_scc0 L_p_dma")
    srd(64, 34, 5120)
    a(f"""
    v_mov_b32 v10, {L_CNT}
    v_mov_b32 v12, 0
    v_mov_b32 v13, 0
    ds_write_b64 v10, v[12:13]
    ds_write_b64 v10, v[12:13] offset:8
    ds_write_b64 v10, v[12:13] offset:16
    ds_write_b64 v10, v[12:13] offset:24
    ds_write_b64 v10, v[12:13] offset:32
    ds_write_b64 v10, v[12:13] offset:40
    ds_write_b64 v10, v[12:13] offset:48
    v_and_b32 v6, 3, v4
    v_mul_u32_u24 v11, 1280, v6
    v_lshl_add_u32 v11, v5, 4, v11
    s_mul_i32 s10, s88, 320
    v_mul_u32_u24 v14, 1280, v5
    v_mul_u32_u24 v15, 20, v4
    v_add_u32 v14, v14, v15
    buffer_load_dwordx4 v[204:207], v14, {sC}, s10 offen
    buffer_load_dword v55, v14, {sC}, s10 offen offset:16
    """)
    srd(64, 16, 5120)
    a(f"""
    v_lshrrev_b32 v7, 2, v4        ; tq
    v_mul_u32_u24 v16, 320, v7
    v_add_u32 v16, v16, v11        ; b*1280 + tq*320 + g*16
    v_mul_u32_u24 v17, 1280, v6
    v_lshl_add_u32 v17, v7, 5, v17
    v_lshl_add_u32 v17, v5, 3, v17 ; b*1280 + tq*32 + g*8
    s_lshl_b32 s10, s90, 8
    """)
    for i in range(5):
        a(f"buffer_load_dwordx4 v[{128+4*i}:{131+4*i}], v16, {sC}, 0 offen offset:{i*64}")
    a(f"buffer_load_dwordx2 v[148:149], v17, {sC}, s10 offen")
    a(f"buffer_load_dwordx2 v[150:151], v17, {sC}, s10 offen offset:128")
    a(f"""
    v_mul_u32_u24 v16, 1280, v5
    v_lshl_add_u32 v16, v4, 2, v16
    s_lshl_b32 s10, s100, 6
    buffer_load_dword v52, v16, {sC}, s10 offen
    """)
    a("L_p_dma:")
    a("s_cmp_ge_u32 s2, 240\ns_cbranch_scc1 L_p_nodma")
    for j in range(3):
        if j == 2: a("s_cmp_ge_u32 s3, 4\ns_cbranch_scc1 L_p_wq")
        a(f"s_add_u32 m0, s12, {L_WM + j*8192}")
        a(f"buffer_load_dwordx4 v8, {sA}, s11 offen nt lds")
        if j < 2: a(f"s_add_u32 s11, s11, {64*7680}")
    a("L_p_wq:")
    def wq_dma(i):
        a(f"s_add_u32 m0, s14, {i*1024}")
        a(f"buffer_load_dwordx4 v61, {sB}, s13 offen nt lds")
        a(f"s_add_u32 s13, s13, {4*12288}")
    for i in range(NWQ0): wq_dma(i)
    a("s_branch L_p_dmadone")
    a("L_p_nodma:")
    a("s_mov_b32 s13, 0x10000000")
    a("L_p_dmadone:")
    a("s_cmp_eq_u32 s3, 0\ns_cbranch_scc1 L_helper")

    KB, VB = 64, 160
    PS = 56
    class Stream:
        def __init__(self, D):
            self.D = D; self.ops = []; self.last_pair = None; self.sigs = []; self.DL = 0; self.pace = False; self.pend = False; self.rolex = 0; self.tk = False
        def thr(self):
            if self.DL and len(self.ops) >= self.DL:
                lab = a.label("L_sk")
                a(f"s_cbranch_vccnz {lab}\ns_waitcnt vmcnt({self.DL-1})\n{lab}:")
            if self.D and len(self.ops) >= self.D:
                a(f"s_waitcnt vmcnt({self.D-1})")
                for (tag, off) in list(self.sigs):
                    idx = max(i for i, o in enumerate(self.ops) if o == tag)
                    if len(self.ops) - 1 - idx >= self.D - 1:
                        EX(1, 0)
                        a(f"ds_add_u32 v10, v11 offset:{off}")
                        EXALL()
                        self.sigs.remove((tag, off))
        def load(self, which, T, s):
            base = KB if which == 'k' else VB
            sr = sK if which == 'k' else sV
            vo = 2 if which == 'k' else 3
            pair = T // 2
            if rot:
                if s == 0:
                    a(f"s_add_u32 s8, s13, {T}\ns_and_b32 s8, s8, 7\ns_mul_i32 s8, s8, 24576\ns_add_u32 s8, s8, s7")
                    if prio and which == 'v' and T >= 5: a(f"s_setprio {7 - T}")
            elif pair != self.last_pair:
                a(f"s_add_u32 s8, s7, {pair*6144}"); self.last_pair = pair
            cnt = (0 if which == 'k' else 24) + T * 3 + s
            if self.pace and s == 2 and cnt + 1 - S > 0 and cnt < 47:
                a(f"s_load_dwordx8 s[{PS}:{PS+7}], s[34:35], 0 glc")
                self.pend = True
            self.thr()
            r = base + T * 12 + s * 4
            a(f"buffer_load_dwordx4 v[{r}:{r+3}], v{vo}, {sr}, s8 offen offset:{(0 if rot else (T%2)*3072) + s*128} nt")
            self.ops.append((which, T))
            if self.pace:
                lab = a.label("L_pb")
                a(f"s_cmp_eq_u32 s3, 7\ns_cbranch_scc0 {lab}\nv_add_u32 v61, 1, v61")
                EX(1, 0)
                a(f"buffer_store_dword v61, v1, {sWS}, s36 offen sc1")
                EXALL()
                a(f"{lab}:")
        def tile(self, which, T):
            if self.DL:
                lab = a.label("L_fc")
                a(f"""
                s_cbranch_vccnz {lab}
                ds_read_b32 v12, v10 offset:8
                s_waitcnt lgkmcnt(0)
                v_cmp_ne_u32 vcc, 0, v12
                {lab}:
                """)
            if self.pace and self.pend:
                cnt = (0 if which == 'k' else 24) + T * 3
                need = cnt - S
                l1 = a.label("L_pc"); l2 = a.label("L_pk")
                a(f"{l1}:\ns_waitcnt lgkmcnt(0)\ns_add_u32 s9, s37, {need}")
                a(f"s_sub_u32 s{PS}, s{PS}, s9")
                for i in range(1, 8):
                    a(f"s_sub_u32 s{PS+i}, s{PS+i}, s9\ns_max_u32 s{PS}, s{PS}, s{PS+i}")
                a(f"""
                s_cmp_le_u32 s{PS}, {255 - need}
                s_cbranch_scc1 {l2}
                s_load_dwordx8 s[{PS}:{PS+7}], s[34:35], 0 glc
                s_sub_u32 s84, s84, 1
                s_cmp_lg_u32 s84, 0
                s_cbranch_scc1 {l1}
                s_waitcnt lgkmcnt(0)
                {l2}:
                """)
                self.pend = False
            if self.tk and which == 'v' and T == TKT:
                lab = a.label("L_tk")
                a(f"s_cmp_eq_u32 s3, 7\ns_cbranch_scc0 {lab}\ns_mov_b32 s36, 1\ns_atomic_add s36, s[40:41], 0 glc\n{lab}:")
            for s in range(3): self.load(which, T, s)
            if self.tk and which == 'v' and T == TKT:
                lab = a.label("L_tk")
                a(f"""
                s_cmp_eq_u32 s3, 7
                s_cbranch_scc0 {lab}
                s_waitcnt lgkmcnt(0)
                s_add_u32 s36, s36, 1
                v_mov_b32 v6, {L_CNT}
                v_mov_b32 v7, s36
                ds_write_b32 v6, v7 offset:24
                {lab}:
                """)
        def wait(self, tag):
            if tag not in self.ops: return
            idx = max(i for i, o in enumerate(self.ops) if o == tag)
            n = len(self.ops) - 1 - idx
            if self.rolex and n < 24:
                l1 = a.label("L_w"); l2 = a.label("L_w")
                a(f"s_cmp_ge_u32 s3, 4\ns_cbranch_scc1 {l1}\ns_waitcnt vmcnt({n})\ns_branch {l2}\n{l1}:\ns_waitcnt vmcnt({n + self.rolex})\n{l2}:")
            else:
                a(f"s_waitcnt vmcnt({min(n, 63)})")
        def other(self, tag):
            self.thr()
            self.ops.append(tag)

    def setup2():
        a(f"""
        s_cmp_gt_u32 s3, 4
        s_cselect_b32 s9, 2, 1
        s_sub_u32 s9, s3, s9
        s_lshl_b32 s9, s9, 2           ; p0 = 4 zi
        s_mul_i32 s10, s3, {8*384 if rot else 64*384}
        s_sub_u32 s10, s7, s10
        """)
        for j in range(4):
            a(f"""
            s_add_u32 s11, s9, {j}
            s_mul_i32 s12, s11, 171
            s_lshr_b32 s12, s12, 9         ; T
            s_mul_i32 s26, s12, {(24576 if rot else 3072) - 384}
            s_lshl_b32 s27, s11, 7         ; p*128
            s_add_u32 s26, s26, s27
            s_add_u32 s26, s26, s10
            s_lshl_b32 s27, s11, 10
            s_add_u32 s15, s27, {L_HK}
            s_add_u32 s27, s27, {L_HV}
            s_cmp_eq_u32 s3, 4
            s_cselect_b32 s{16+j}, 0x10000000, s26
            s_cselect_b32 s{20+j}, {L_DUMMY}, s15
            s_cselect_b32 s{64+j}, {L_DUMMY}, s27
            """)
        a(f"""
        s_mul_i32 s9, s2, 6554
        s_lshr_b32 s9, s9, 16          ; ob = u/10
        s_mul_i32 s10, s9, 10
        s_sub_u32 s10, s2, s10         ; oc
        s_lshl_b32 s9, s9, 8
        s_and_b32 s12, s3, 3           ; w&3
        s_lshl_b32 s11, s12, 6
        s_add_u32 s9, s9, s11
        s_mul_i32 s9, s9, 1280
        s_lshl_b32 s10, s10, 7
        s_add_u32 s68, s9, s10
        v_lshrrev_b32 v59, 3, v1
        v_mul_u32_u24 v59, 1280, v59
        v_and_b32 v60, 7, v1
        v_lshl_add_u32 v59, v60, 4, v59
        v_mul_u32_u24 v60, 3072, v5
        v_lshl_add_u32 v60, v4, 4, v60
        v_lshlrev_b32 v62, 4, v1
        s_lshl_b32 s9, s100, 5
        s_lshl_b32 s10, s12, 3
        s_add_u32 s9, s9, s10
        s_mul_i32 s9, s9, 3072
        s_lshl_b32 s10, s99, 8
        s_add_u32 s69, s9, s10                 ; w1 soffset
        s_sub_u32 s11, s2, {S2_0}
        s_mul_i32 s11, s11, 20480
        s_mul_i32 s71, s12, 5120
        s_add_u32 s70, s11, s71
        s_lshr_b32 s9, s2, 3
        s_lshl_b32 s9, s9, 7
        s_add_u32 s9, s9, {PG}
        s_add_u32 s34, s42, s9
        s_addc_u32 s35, s43, 0
        s_and_b32 s10, s2, 7
        s_lshl_b32 s10, s10, 2
        s_add_u32 s36, s9, s10
        s_lshl_b32 s37, {TAG}, 8
        s_add_u32 s9, s37, 3
        v_mov_b32 v61, s9
        """)
    def hshare(st, which):
        for j in range(4):
            st.other(('h' + which, 0))
            a(f"s_mov_b32 m0, s{(20 if which == 'k' else 64)+j}")
            a(f"buffer_load_dwordx4 v{2 if which == 'k' else 3}, {sK if which == 'k' else sV}, s{16+j} offen nt lds")
    def wo_dma(st): pass
    def tail_dma(st):
        if not early: return
        lab = a.label("L_td"); lp = a.label("L_tp")
        N1 = 240 - 2 * N2
        a(f"s_cmp_lt_u32 s3, 4\ns_cbranch_scc1 {lab}")
        srd(56, 24, 7864320)
        a(f"""
        v_mov_b32 v6, {L_CNT}
        {lp}:
        ds_read2_b32 v[58:59], v6 offset0:3 offset1:6
        s_waitcnt lgkmcnt(0)
        v_min_u32 v7, v58, v59
        v_readfirstlane_b32 s36, v59
        v_cmp_eq_u32 vcc, 0, v7
        s_cbranch_vccz {lp}_ok
        s_sleep 1
        s_sub_u32 s84, s84, 1
        s_cmp_lg_u32 s84, 0
        s_cbranch_scc1 {lp}
        {lp}_ok:
        v_lshrrev_b32 v59, 3, v1
        v_mul_u32_u24 v59, 1280, v59
        v_and_b32 v7, 7, v1
        v_lshl_add_u32 v59, v7, 4, v59
        s_sub_u32 s36, s36, 1             ; ticket
        s_add_u32 s35, s36, {N2}
        s_cmp_lt_u32 s36, {N2}
        s_cselect_b32 s35, s36, s35       ; unit A
        s_mul_i32 s9, s35, 6554
        s_lshr_b32 s9, s9, 16             ; ob
        s_mul_i32 s10, s9, 10
        s_sub_u32 s10, s35, s10           ; oc
        s_lshl_b32 s11, s9, 2
        s_and_b32 s12, s3, 3
        s_add_u32 s11, s11, s12
        s_mul_i32 s68, s11, {64*1280}
        s_lshl_b32 s10, s10, 7
        s_add_u32 s68, s68, s10
        s_cmp_lt_u32 s36, {N2 + N1}
        s_cselect_b32 s68, s68, 0x10000000
        s_lshl_b32 s12, s12, 13
        """)
        for i in range(8):
            a(f"s_add_u32 m0, s12, {L_WO + i*1024}")
            a(f"buffer_load_dwordx4 v59, {sA}, s68 offen nt lds")
            if i < 7: a("s_add_u32 s68, s68, 10240")
        a(f"{lab}:")
        st.rolex = 8
    def wo_late():
        srd(56, 24, 7864320)
        a("s_and_b32 s9, s3, 3\ns_lshl_b32 s9, s9, 13")
        a("s_barrier")
        for i in range(8):
            a(f"s_add_u32 m0, s9, {L_WO + i*1024}")
            a(f"buffer_load_dwordx4 v59, {sA}, s68 offen nt lds")
            if i < 7: a("s_add_u32 s68, s68, 10240")
    def w1_late():
        a("s_barrier")
        srd(60, 28, 1966080)
        srd(64, 30, 1966080)
        a("s_lshl_b32 s9, s3, 11")
        for i in range(2):
            a(f"s_add_u32 m0, s9, {L_W1 + i*1024}\nbuffer_load_dwordx4 v60, {sB}, s69 offen nt lds")
            a(f"s_add_u32 m0, s9, {L_W1 + 8192 + i*1024}\nbuffer_load_dwordx4 v60, {sC}, s69 offen nt lds")
            if i < 1: a(f"s_add_u32 s69, s69, {4*3072}")
        lab = a.label("L_nowd")
        a(f"s_cmp_lt_u32 s2, {S2_0}\ns_cbranch_scc1 {lab}")
        srd(56, 32, 1966080)
        for i in range(5):
            a(f"s_add_u32 m0, s71, {L_WD + i*1024}\nbuffer_load_dwordx4 v62, {sA}, s70 offen nt lds")
            if i < 4: a("s_add_u32 s70, s70, 1024")
        a(f"s_waitcnt vmcnt(5)\ns_branch L_t_b2\n{lab}:\ns_waitcnt vmcnt(0)")
    def lpoll(name, off, target):
        a(f"""
        {name}:
        ds_read_b32 v11, v10 offset:{off}
        s_waitcnt lgkmcnt(0)
        v_cmp_gt_u32 vcc, {target}, v11
        s_cbranch_vccz {name}_ok
        s_sleep 1
        s_sub_u32 s84, s84, 1
        s_cmp_lg_u32 s84, 0
        s_cbranch_scc1 {name}
        {name}_ok:
        """)

    def attention(st, nv1, kind):
        st.last_pair = None
        a(f"""
        v_and_b32 v6, 1, v4
        v_lshl_add_u32 v6, v6, 2, v5
        v_lshlrev_b32 v6, 4, v6
        v_add_u32 v6, {L_Q}, v6
        ds_read_b128 v[8:11], v6
        ds_read_b128 v[12:15], v6 offset:128
        ds_read_b128 v[16:19], v6 offset:256
        """)
        nxt = nv1
        def more():
            nonlocal nxt
            if nxt < 8:
                st.tile('v', nxt); nxt += 1
        if kind == 'A': wo_dma(st)
        a(f"""
        v_and_b32 v6, 1, v4
        v_mov_b32 v7, 0xffff
        v_lshlrev_b32 v6, 4, v6
        v_lshlrev_b32 v7, v6, v7
        v_bfe_u32 v6, v4, 1, 2            ; r
        v_cmp_eq_u32 vcc, 0, v6
        v_cndmask_b32 v52, 0, v7, vcc
        v_cmp_eq_u32 vcc, 1, v6
        v_cndmask_b32 v53, 0, v7, vcc
        v_cmp_eq_u32 vcc, 2, v6
        v_cndmask_b32 v54, 0, v7, vcc
        v_cmp_eq_u32 vcc, 3, v6
        v_cndmask_b32 v55, 0, v7, vcc
        s_waitcnt lgkmcnt(0)
        """)
        for T in range(8):
            st.wait(('k', T))
            Dd = 20 + 4 * T
            for s in range(3):
                k = KB + T * 12 + s * 4
                c = "0" if s == 0 else f"v[{Dd}:{Dd+3}]"
                a(f"v_mfma_f32_16x16x32_bf16 v[{Dd}:{Dd+3}], v[{k}:{k+3}], v[{8+4*s}:{11+4*s}], {c}")
        more()
        for T in range(8):
            Dd = 20 + 4 * T
            a(f"v_cndmask_b32 v{Dd}, v{Dd}, v{Dd+1}, {mODD}")
            a(f"v_cndmask_b32 v{Dd+2}, v{Dd+2}, v{Dd+3}, {mODD}")
            a(f"v_cndmask_b32 v{Dd}, v{Dd}, v{Dd+2}, {mNHI}")
        S = [20 + 4 * T for T in range(8)]
        for T in range(8):
            a(f"v_add_f32_dpp v{S[T]}, v{S[T]}, v{S[T]} quad_perm:[1,0,3,2] row_mask:0xf bank_mask:0xf")
        for T in range(0, 8, 2):
            rnd2(S[T], S[T+1], S[T] + 1)
        for T in range(8):
            a(f"v_mul_f32 v{S[T]}, {hex(SCALE)}, v{S[T]}")
        for T in range(0, 8, 2):
            rnd2(S[T], S[T+1], S[T] + 1)
        a(f"""
        v_max3_f32 v56, v{S[0]}, v{S[1]}, v{S[2]}
        v_max3_f32 v56, v56, v{S[3]}, v{S[4]}
        v_max3_f32 v56, v56, v{S[5]}, v{S[6]}
        v_max_f32 v56, v56, v{S[7]}
        """)
        ror(56, 8, "v_max_f32")
        xrow_sum(56, 58, "v_max_f32")
        for T in range(8):
            a(f"v_sub_f32 v{S[T]}, v{S[T]}, v56")
        for T in range(8):
            a(f"v_mul_f32 v{S[T]}, {hex(LOG2E)}, v{S[T]}")
        for T in range(8):
            a(f"v_exp_f32 v{S[T]}, v{S[T]}")
        a(f"v_add_f32 v57, v{S[0]}, v{S[1]}")
        for T in range(2, 8):
            a(f"v_add_f32 v57, v57, v{S[T]}")
        for T in range(8):
            a(f"v_cvt_pk_bf16_f32 v{8+T}, v{S[T]}, v{S[T]}")
        ror(57, 8)
        xrow_sum(57, 58)
        a(f"""
        s_lshl_b32 s9, s3, 3
        s_add_u32 s9, s9, {L_MLW}
        v_mov_b32 v6, s9
        ds_write_b64 v6, v[56:57]
        """)
        TS(2)
        def pv(T):
            A = 32 + 4 * (T % 2)
            for r in range(4):
                a(f"v_and_b32 v{A+r}, v{8+T}, v{52+r}")
            if T == 7 and not early:
                lab = a.label("L_tk")
                a(f"s_cmp_eq_u32 s3, 7\ns_cbranch_scc0 {lab}\ns_mov_b32 s36, 1\ns_atomic_add s36, s[40:41], 0 glc\n{lab}:")
            st.wait(('v', T))
            for s in range(3):
                v = VB + T * 12 + s * 4
                Dd = 20 + 4 * s
                c = "0" if T == 0 else f"v[{Dd}:{Dd+3}]"
                a(f"v_mfma_f32_16x16x32_bf16 v[{Dd}:{Dd+3}], v[{A}:{A+3}], v[{v}:{v+3}], {c}")
        pvn = 0
        while nxt < 8:
            more()
            while pvn <= nxt - 3:
                pv(pvn); pvn += 1
        st.D = 0
        if kind == 'A': tail_dma(st)
        while pvn < 8:
            pv(pvn); pvn += 1
        a("s_branch L_tail")

    st = Stream(0)
    a("s_barrier")
    a(f"""
    v_mov_b32 v10, {L_CNT}
    v_mov_b32 v11, 1
    s_waitcnt vmcnt({NWQ0})
    """)
    EX(1, 0)
    a("ds_add_u32 v10, v11")
    EXALL()
    st.ops = [('wq', 0)] * NWQ0
    st.D = D1
    for i in range(NWQ0, 4):
        st.other(('wq', 0)); wq_dma(i)
    st.sigs.append((('wq', 0), 4))
    a("s_lshr_b32 s13, s2, 3\ns_add_u32 s13, s13, s2")
    if prio: a("s_setprio 2")
    st.tile('k', 0)
    a(f"s_waitcnt lgkmcnt(0)\ns_add_u32 {TAG}, {TAG}, 1")
    setup2()
    st.last_pair = None
    st.pace = S > 0
    st.tk = bool(early)
    st.tile('k', 1)
    assert not st.sigs
    a("s_mov_b64 vcc, 0")
    if dly[1]: a(f"s_sleep {dly[1]}")
    st.D = D; st.DL = DL if DL < D else 0
    for T in range(2, 8):
        st.tile('k', T)
        if T in (1, 3, 5, 7): TS2(8 + T // 2)
        if T == 3:
            hshare(st, 'k'); st.sigs.append((('hk', 0), 16))
    for T in range(NV1):
        if T == NL: st.DL = 0
        st.tile('v', T)
        if T in (1, 3): TS2(12 + T // 2)
        if T == 0:
            hshare(st, 'v'); st.sigs.append((('hv', 0), 20))
    st.DL = 0
    assert not st.sigs
    TS(1)
    a(f"""
    ds_read_b32 v11, v10 offset:8
    s_waitcnt lgkmcnt(0)
    v_cmp_eq_u32 vcc, 0, v11
    s_cbranch_vccnz L_late
    """)
    st2 = copy.deepcopy(st)
    attention(st, NV1, 'A')
    a("L_late:")
    wo_dma(st2)
    st2.last_pair = None
    for T in range(NV1, 8): st2.tile('v', T)
    st2.D = 0
    tail_dma(st2)
    lpoll("L_late_q", 8, 1)
    a("L_attB:")
    attention(st2, 8, 'B')

    a("L_helper:")
    a(f"s_setprio 3\ns_waitcnt lgkmcnt(0)\ns_add_u32 {TAG}, {TAG}, 1\ns_barrier")
    if noprefix:
        for i in range(NWQ0, 4): wq_dma(i)
        a("s_waitcnt vmcnt(0)\ns_branch L_h_qdone")
    a("s_cmp_ge_u32 s2, 240\ns_cbranch_scc1 L_h_nounit2")
    a(f"s_waitcnt vmcnt({8+3+NWQ0})")
    for src in (204, 205, 206, 207, 55):
        a(f"""
        v_lshlrev_b32 v8, 16, v{src}
        v_and_b32 v9, 0xffff0000, v{src}
        v_mul_f32 v10, {hex(LOG2E | 0x80000000)}, v8
        v_mul_f32 v11, {hex(LOG2E | 0x80000000)}, v9
        v_exp_f32 v10, v10
        v_exp_f32 v11, v11
        v_add_f32 v10, 1.0, v10
        v_add_f32 v11, 1.0, v11
        v_rcp_f32 v10, v10
        v_rcp_f32 v11, v11
        v_mul_f32 v8, v8, v10
        v_mul_f32 v9, v9, v11
        v_cvt_pk_bf16_f32 v{src}, v8, v9
        """)
    a(f"""
    v_mul_u32_u24 v8, 320, v5
    v_mul_u32_u24 v9, 20, v4
    v_add3_u32 v8, v8, v9, 0
    v_add_u32 v8, {L_RED}, v8
    ds_write2_b32 v8, v204, v205 offset0:0 offset1:1
    ds_write2_b32 v8, v206, v207 offset0:2 offset1:3
    ds_write_b32 v8, v55 offset:16
    v_and_b32 v9, 3, v4
    v_mul_u32_u24 v9, 320, v9
    v_lshl_add_u32 v9, v5, 4, v9
    v_add_u32 v9, {L_RED}, v9
    s_mov_b32 s56, 0x00f000f0
    s_mov_b32 s57, 0x00f000f0
    s_mov_b32 s58, 0x0f000f00
    s_mov_b32 s59, 0x0f000f00
    s_mov_b32 s64, 0xf000f000
    s_mov_b32 s65, 0xf000f000
    s_waitcnt lgkmcnt(0)
    """)
    for t in range(5):
        a(f"ds_read_b128 v[{160+4*t}:{163+4*t}], v9 offset:{t*64}")
    def sel_j(dst, sets):
        for v in range(4):
            a(f"v_cndmask_b32 v{dst+v}, v{sets[0]+v}, v{sets[1]+v}, s[56:57]")
            a(f"v_cndmask_b32 v{dst+v}, v{dst+v}, v{sets[2]+v}, s[58:59]")
            a(f"v_cndmask_b32 v{dst+v}, v{dst+v}, v{sets[3]+v}, s[64:65]")
    a(f"""
    v_lshrrev_b32 v6, 2, v4
    v_and_b32 v7, 3, v4
    v_lshl_add_u32 v6, v5, 3, v6   ; 8g + r
    v_lshlrev_b32 v8, 7, v6
    v_lshl_add_u32 v8, v7, 3, v8
    v_lshlrev_b32 v53, 8, v6
    v_lshl_add_u32 v53, v7, 3, v53
    v_mov_b32 v10, {L_CNT}
    s_waitcnt vmcnt({NWQ0})
    """)
    for i in range(NWQ0, 4): wq_dma(i)
    lpoll("L_h_lpoll", 0, 7)
    TS(13)
    TS2(13)
    if dly[0]: a(f"s_sleep {dly[0]}")
    def wm_reads(t):
        for nt in range(4):
            r = 208 + (t % 2) * 16 + nt * 4
            off = L_WM + t * 4096 + nt * 32
            a(f"ds_read_b64_tr_b16 v[{r}:{r+1}], v8 offset:{off}")
            a(f"ds_read_b64_tr_b16 v[{r+2}:{r+3}], v8 offset:{off+512}")
    def f1flag():
        a(f"""
        s_cmp_ge_u32 s89, 20
        s_cbranch_scc1 L_h_nof1
        s_cmp_ge_u32 s89, 10
        s_cselect_b32 s9, 10, 0
        s_cselect_b32 s10, 2, 0
        s_sub_u32 s9, s89, s9          ; cbk%10
        s_lshr_b32 s11, s9, 1
        s_and_b32 s9, s9, 1
        s_add_u32 s10, s10, s9
        s_lshl_b32 s9, s88, 2
        s_add_u32 s10, s10, s9         ; slot
        s_lshl_b32 s10, s10, 2
        s_mul_i32 s11, s11, {48*128}
        s_add_u32 s11, s11, s10
        s_add_u32 s11, s11, {F1}
        v_lshlrev_b32 v12, 7, v1
        v_mov_b32 v13, {TAG}
        """)
        EX(0xffffffff, 0xffff)
        a(f"buffer_store_dword v13, v12, {sWS}, s11 offen sc1")
        EXALL()
        a("L_h_nof1:")
    wm_reads(0)
    if ef[3]: f1flag()
    for t in range(5):
        a("s_waitcnt lgkmcnt(0)")
        if t < 4: wm_reads(t + 1)
        for nt in range(4):
            r = 208 + (t % 2) * 16 + nt * 4
            Dd = 20 + 4 * nt
            c = "0" if t == 0 else f"v[{Dd}:{Dd+3}]"
            a(f"v_mfma_f32_16x16x32_bf16 v[{Dd}:{Dd+3}], v[{r}:{r+3}], v[{160+4*t}:{163+4*t}], {c}")
    a(f"""
    v_and_b32 v9, 3, v4
    v_mul_u32_u24 v9, 15360, v9
    v_lshrrev_b32 v11, 2, v4
    v_lshl_add_u32 v9, v11, 6, v9
    v_lshl_add_u32 v9, v5, 4, v9
    s_mul_i32 s11, s88, {4*15360}
    s_lshl_b32 s12, s89, 8
    s_add_u32 s11, s11, s12
    s_add_u32 s11, s11, {MODP}
    """)
    sel_j(36, [20, 24, 28, 32])
    pack4(36, 36, 37, 38, 39)
    a(f"buffer_store_dwordx4 v[36:39], v9, {sWS}, s11 offen sc1")
    TS(1)
    if not ef[3]: f1flag()
    def wq_reads(t, base):
        for nt in range(8):
            r = base + nt * 4
            off = L_WQ + t * 8192 + nt * 32
            a(f"ds_read_b64_tr_b16 v[{r}:{r+1}], v53 offset:{off}")
            a(f"ds_read_b64_tr_b16 v[{r+2}:{r+3}], v53 offset:{off+1024}")
            if nt % 4 == 3: a("s_waitcnt lgkmcnt(4)")
    a(f"""
    v_and_b32 v6, 3, v4
    v_lshrrev_b32 v7, 2, v4
    v_mul_u32_u24 v8, 15360, v6
    v_lshl_add_u32 v8, v7, 6, v8
    v_lshl_add_u32 v8, v5, 4, v8     ; b*15360 + tq*64 + g*16
    s_lshl_b32 s13, s90, 9           ; kq*512
    s_add_u32 s13, s13, {MODP}
    """)
    a(f"s_waitcnt lgkmcnt(0)\ns_lshl_b32 s9, s101, 7\ns_add_u32 s9, s9, {F1}")
    TS2(10)
    fpoll("L_h_sp1", "s9", 16, 16, 56, sleep=1)
    TS2(11)
    def g1_loads():
        a("s_mov_b32 s11, s13")
        for ks in range(4):
            r = 192 + ks * 16
            for j, off in enumerate((0, 256, 2560, 2816)):
                a(f"buffer_load_dwordx4 v[{r+4*j}:{r+4*j+3}], v8, {sWS}, s11 offen offset:{off} sc1")
            if ks < 3: a("s_add_u32 s11, s11, 61440")
    g1_loads()
    XU = 64
    for i in range(20):
        a(f"v_lshlrev_b32 v{XU+2*i}, 16, v{128+i}\nv_and_b32 v{XU+1+2*i}, 0xffff0000, v{128+i}")
    a(f"v_add_f32 v10, v{XU}, v{XU+1}")
    for i in range(2, 40):
        a(f"v_add_f32 v10, v10, v{XU+i}")
    ror(10, 4); ror(10, 8); xrow_sum(10, 11)
    a(f"v_mul_f32 v10, {hex(0x3ACCCCCD)}, v10")
    for i in range(40):
        a(f"v_sub_f32 v{XU+i}, v{XU+i}, v10")
    a(f"v_mul_f32 v12, v{XU}, v{XU}")
    for i in range(1, 40):
        a(f"v_fmac_f32 v12, v{XU+i}, v{XU+i}")
    ror(12, 4); ror(12, 8); xrow_sum(12, 11)
    a(f"v_mul_f32 v12, {hex(0x3ACCCCCD)}, v12")
    rnd2(10, 12, 11)
    a(f"v_add_f32 v12, {hex(0x3727C5AC)}, v12")
    rnd1(12)
    a("v_sqrt_f32 v12, v12")
    rnd1(12)
    a("v_rcp_f32 v12, v12")
    for i in range(4):
        a(f"v_lshlrev_b32 v{44+2*i}, 16, v{148+i}\nv_and_b32 v{45+2*i}, 0xffff0000, v{148+i}")
    for i in range(8):
        a(f"v_sub_f32 v{44+i}, v{44+i}, v10")
    for i in range(0, 8, 2): rnd2(44 + i, 45 + i, 11)
    for i in range(8):
        a(f"v_mul_f32 v{44+i}, v{44+i}, v12")
    for i in range(0, 8, 2): rnd2(44 + i, 45 + i, 11)
    a(f"v_mov_b32 v10, {L_CNT}\ns_waitcnt vmcnt(16)")
    lpoll("L_h_lpoll2", 4, 7)
    TS2(9)
    for t in range(4): wq_reads(t, 64 + 32 * t)
    TS2(8)
    a("s_branch L_h_poll1c")
    a("L_h_poll1:")
    g1_loads()
    a("L_h_poll1c:")
    a("s_waitcnt vmcnt(0)")
    chk([195 + 4 * i for i in range(16)], 10, "L_h_poll1", sleep=2)
    TS(4)
    a(f"""
    s_mov_b32 s56, 0x00f000f0
    s_mov_b32 s57, 0x00f000f0
    s_mov_b32 s58, 0x0f000f00
    s_mov_b32 s59, 0x0f000f00
    s_mov_b32 s64, 0xf000f000
    s_mov_b32 s65, 0xf000f000
    """)
    for i in range(16): unpack4(192 + 4 * i)
    for i in range(0, 16, 2):
        a(f"v_pk_add_f32 v[{192+i}:{193+i}], v[{192+i}:{193+i}], v[{208+i}:{209+i}]\nv_pk_add_f32 v[{224+i}:{225+i}], v[{224+i}:{225+i}], v[{240+i}:{241+i}]")
    for i in range(0, 16, 2):
        a(f"v_pk_add_f32 v[{192+i}:{193+i}], v[{192+i}:{193+i}], v[{224+i}:{225+i}]")
    for i in range(0, 16, 2): rnd2(192 + i, 193 + i, 11)
    for i in range(8):
        a(f"v_add_f32 v{200+i}, 1.0, v{200+i}")
    for i in range(0, 8, 2): rnd2(200 + i, 201 + i, 11)
    for i in range(8):
        a(f"v_mul_f32 v{44+i}, v{44+i}, v{200+i}")
    for i in range(0, 8, 2): rnd2(44 + i, 45 + i, 11)
    for i in range(8):
        a(f"v_add_f32 v{44+i}, v{44+i}, v{192+i}")
    for i in range(4):
        a(f"v_cvt_pk_bf16_f32 v{40+i}, v{44+2*i}, v{45+2*i}")
    a(f"""
    v_lshlrev_b32 v8, 8, v6
    v_lshl_add_u32 v9, v5, 4, v8       ; b*256 + g*16
    v_add_u32 v9, {L_HB}, v9
    v_lshl_add_u32 v8, v7, 5, v8
    v_lshl_add_u32 v8, v5, 3, v8       ; b*256 + tq*32 + g*8
    v_add_u32 v8, {L_HB}, v8
    s_waitcnt lgkmcnt(0)
    ds_write_b64 v8, v[40:41]
    ds_write_b64 v8, v[42:43] offset:128
    s_waitcnt lgkmcnt(0)
    ds_read_b128 v[192:195], v9
    ds_read_b128 v[196:199], v9 offset:64
    ds_read_b128 v[200:203], v9 offset:128
    ds_read_b128 v[204:207], v9 offset:192
    s_waitcnt lgkmcnt(0)
    """)
    def f2flag():
        a(f"""
        s_lshl_b32 s9, s91, 1          ; 2qb
        s_mul_i32 s10, s9, 171
        s_lshr_b32 s10, s10, 9
        s_add_u32 s9, s9, 1
        s_mul_i32 s9, s9, 171
        s_lshr_b32 s9, s9, 9
        v_mov_b32 v8, s10
        v_mov_b32 v9, s9
        v_cndmask_b32 v8, v8, v9, {mNHI}     ; h
        v_mul_u32_u24 v9, 3, v8
        v_lshrrev_b32 v9, 1, v9
        v_sub_u32 v9, s91, v9          ; j
        s_lshl_b32 s9, s90, 1
        v_add_u32 v9, s9, v9           ; slot
        v_and_b32 v10, 7, v1
        v_lshlrev_b32 v10, 2, v10      ; 4b + 16s
        v_and_b32 v11, 3, v8
        v_add_u32 v10, v10, v11
        v_lshrrev_b32 v11, 2, v8
        v_lshl_add_u32 v10, v10, 3, v11      ; wg
        v_lshlrev_b32 v10, 7, v10
        v_lshl_add_u32 v10, v9, 2, v10
        v_mov_b32 v8, {TAG}
        s_mov_b32 s9, {F2}
        """)
        EX(0xffff, 0)
        a(f"buffer_store_dword v8, v10, {sWS}, s9 offen sc1")
        EXALL()
    if ef[4] == 1: f2flag()
    for t in range(4):
        base = 64 + 32 * t
        for nt in range(8):
            r = base + nt * 4
            Dd = 20 + 4 * nt
            c = "0" if t == 0 else f"v[{Dd}:{Dd+3}]"
            a(f"v_mfma_f32_16x16x32_bf16 v[{Dd}:{Dd+3}], v[{r}:{r+3}], v[{192+4*t}:{195+4*t}], {c}")
    if ef[4] == 2: f2flag()
    a(f"""
    v_mul_u32_u24 v9, 24576, v6
    v_lshl_add_u32 v9, v7, 6, v9
    v_lshl_add_u32 v9, v5, 4, v9
    s_mul_i32 s11, s90, {4*24576}
    s_lshl_b32 s12, s91, 9
    s_add_u32 s11, s11, s12
    s_add_u32 s11, s11, {QP}
    """)
    sel_j(208, [20, 24, 28, 32])
    pack4(208, 208, 209, 210, 211)
    a(f"buffer_store_dwordx4 v[208:211], v9, {sWS}, s11 offen sc1")
    sel_j(212, [36, 40, 44, 48])
    pack4(212, 212, 213, 214, 215)
    a(f"buffer_store_dwordx4 v[212:215], v9, {sWS}, s11 offen offset:256 sc1")
    if not ef[4]: f2flag()
    TS(5)
    a(f"""
    v_mov_b32 v10, {L_CNT}
    v_mov_b32 v11, 1
    ds_write_b32 v10, v11 offset:12
    """)
    a("s_branch L_h_q")
    a("L_h_nounit2:")
    a(f"""
    v_mov_b32 v10, {L_CNT}
    v_mov_b32 v11, 1
    ds_write_b32 v10, v11 offset:12
    """)
    a("L_h_q:")
    a(f"""
    v_min_u32 v8, 47, v1
    v_lshlrev_b32 v8, 4, v8
    s_mul_i32 s11, s5, 24576
    s_mul_i32 s12, s4, 768
    s_add_u32 s11, s11, s12
    s_add_u32 s11, s11, {QP}
    s_waitcnt lgkmcnt(0)
    """)
    a(f"s_lshl_b32 s9, s2, 7\ns_add_u32 s9, s9, {F2}")
    fpoll("L_h_sp2", "s9", 16, 10, 56, sleep=1)
    TS2(12)
    a(f"""
    L_h_poll2:
    s_mov_b32 s12, s11
    """)
    if 'g2' not in abl:
        for kq in range(5):
            a(f"buffer_load_dwordx4 v[{20+4*kq}:{23+4*kq}], v8, {sWS}, s12 offen sc1")
            if kq < 4: a(f"s_add_u32 s12, s12, {4*24576}")
        a("s_waitcnt vmcnt(0)")
        chk(range(23, 40, 4), 9, "L_h_poll2", sleep=2)
    for i in range(5): unpack4(20 + 4 * i)
    for v in range(4):
        a(f"v_add_f32 v{20+v}, v{20+v}, v{24+v}\nv_add_f32 v{28+v}, v{28+v}, v{32+v}")
    for v in range(4):
        a(f"v_add_f32 v{20+v}, v{20+v}, v{28+v}")
    for v in range(4):
        a(f"v_add_f32 v{20+v}, v{20+v}, v{36+v}")
    a(f"""
    v_cvt_pk_bf16_f32 v10, v20, v21
    v_cvt_pk_bf16_f32 v11, v22, v23
    v_lshrrev_b32 v8, 1, v8
    v_add_u32 v8, {L_Q}, v8
    ds_write_b64 v8, v[10:11]
    L_h_qdone:
    v_mov_b32 v10, {L_CNT}
    v_mov_b32 v11, 1
    s_waitcnt lgkmcnt(0)
    ds_write_b32 v10, v11 offset:8
    """)
    TS(6)
    if noprefix: a("ds_write_b32 v10, v11 offset:12")
    a("s_setprio 0")
    if not noprefix and 'g3' not in abl:
        a("s_cmp_ge_u32 s2, 240\ns_cbranch_scc1 L_h_noconst")
        a(f"""
        v_mul_u32_u24 v13, 15360, v5
        v_lshrrev_b32 v14, 1, v4
        v_lshl_add_u32 v13, v14, 4, v13     ; b*15360 + (n>>1)*16
        s_lshl_b32 s13, s100, 7
        s_add_u32 s13, s13, {MODP + 2*2560}
        L_h_poll3:
        s_mov_b32 s11, s13
        """)
        for ks in range(4):
            r = 192 + ks * 16
            a(f"buffer_load_dwordx4 v[{r}:{r+3}], v13, {sWS}, s11 offen sc1")
            a(f"buffer_load_dwordx4 v[{r+4}:{r+7}], v13, {sWS}, s11 offen offset:2560 sc1")
            a("s_add_u32 s12, s11, 5120")
            a(f"buffer_load_dwordx4 v[{r+8}:{r+11}], v13, {sWS}, s12 offen sc1")
            a(f"buffer_load_dwordx4 v[{r+12}:{r+15}], v13, {sWS}, s12 offen offset:2560 sc1")
            if ks < 3: a("s_add_u32 s11, s11, 61440")
        a("s_waitcnt vmcnt(0)")
        chk([195 + 4 * i for i in range(16)], 10, "L_h_poll3", sleep=2)
        for i in range(16): unpack4(192 + 4 * i)
        for i in range(16):
            a(f"v_add_f32 v{192+i}, v{192+i}, v{208+i}\nv_add_f32 v{224+i}, v{224+i}, v{240+i}")
        for i in range(16):
            a(f"v_add_f32 v{192+i}, v{192+i}, v{224+i}")
        for ty in range(4):
            a(f"v_cndmask_b32 v{208+2*ty}, v{192+4*ty}, v{194+4*ty}, {mODD}")
            a(f"v_cndmask_b32 v{209+2*ty}, v{193+4*ty}, v{195+4*ty}, {mODD}")
        rnd2(208, 209, 11); rnd2(212, 213, 11); rnd2(214, 215, 11)
        a(f"""
        v_cvt_pk_bf16_f32 v210, v210, v211
        v_add_f32 v212, 1.0, v212
        v_add_f32 v213, 1.0, v213
        v_cvt_pk_bf16_f32 v211, v212, v213
        v_lshlrev_b32 v212, 16, v211
        v_and_b32 v213, 0xffff0000, v211
        v_lshlrev_b32 v216, 16, v52
        v_and_b32 v217, 0xffff0000, v52
        v_lshlrev_b32 v8, 3, v1
        v_add_u32 v8, {L_CC}, v8
        ds_write_b64 v8, v[208:209]
        ds_write_b64 v8, v[212:213] offset:512
        ds_write_b64 v8, v[216:217] offset:1024
        ds_write_b64 v8, v[214:215] offset:1536
        v_lshlrev_b32 v8, 2, v1
        v_add_u32 v8, {L_SA}, v8
        ds_write_b32 v8, v211
        ds_write_b32 v8, v210 offset:256
        """)

        a("L_h_noconst:")
        a(f"s_waitcnt lgkmcnt(0)\nv_mov_b32 v10, {L_CNT}")
    sth = Stream(0)
    setup2()
    if noprefix: lpoll("L_h_np", 4, 7)
    a(f"v_add_u32 v8, {L_HK}, v62")
    lpoll("L_h_hk", 16, 7)
    for i in range(24):
        a(f"ds_read_b128 v[{64+4*i}:{67+4*i}], v8 offset:{i*1024}")
        if i % 8 == 7: a("s_waitcnt lgkmcnt(0)")
    lpoll("L_h_hv", 20, 7)
    for i in range(24):
        a(f"ds_read_b128 v[{160+4*i}:{163+4*i}], v8 offset:{24576 + i*1024}")
        if i % 8 == 7: a("s_waitcnt lgkmcnt(0)")
    a("s_branch L_attB")

    a("L_tail:")
    a(f"""
    v_lshrrev_b32 v6, 3, v4            ; u
    v_mul_u32_u24 v6, 768, v6
    v_and_b32 v7, 7, v4
    v_lshl_add_u32 v6, v7, 5, v6
    v_and_b32 v7, 1, v5
    v_lshl_add_u32 v6, v7, 4, v6
    s_mul_i32 s8, s3, 1536
    s_add_u32 s8, s8, {L_RED}
    v_add_u32 v6, s8, v6
    v_mov_b32 v17, {L_CNT}
    s_nop 3
    s_mov_b64 exec, {mRED}
    ds_write_b128 v6, v[20:23]
    ds_write_b128 v6, v[24:27] offset:256
    ds_write_b128 v6, v[28:31] offset:512
    s_mov_b64 exec, -1
    s_cmp_eq_u32 s3, {7 if not early else 99}
    s_cbranch_scc0 L_t_notk
    s_waitcnt lgkmcnt(0)
    s_and_b32 s36, s36, 255
    s_add_u32 s36, s36, 1
    v_mov_b32 v7, s36
    ds_write_b32 v17, v7 offset:24
    L_t_notk:
    s_waitcnt lgkmcnt(0)
    """)
    TS(7)
    a("s_barrier")
    a("s_cmp_ge_u32 s3, 3\ns_cbranch_scc1 L_t_nos1")
    a(f"""
    v_mov_b32 v6, {L_MLW}
    ds_read_b128 v[20:23], v6
    ds_read_b128 v[24:27], v6 offset:16
    ds_read_b128 v[28:31], v6 offset:32
    ds_read_b128 v[32:35], v6 offset:48
    v_lshlrev_b32 v7, 2, v0
    v_add_u32 v6, {L_RED}, v7
    """)
    for i in range(16):
        a(f"ds_read_b32 v{64+i}, v6 offset:{i*768}")
    a(f"""
    s_lshl_b32 s8, s5, 1
    s_add_u32 s8, s8, s6
    s_mul_i32 s8, s8, 96
    s_mul_i32 s9, s4, 3
    s_add_u32 s8, s8, s9
    s_add_u32 s8, s8, s3
    s_mul_i32 s8, s8, 384
    s_add_u32 s8, s8, {OPX}
    v_lshlrev_b32 v7, 2, v1
    s_add_u32 s9, s9, s3               ; blk
    s_lshr_b32 s12, s9, 2
    s_mul_i32 s12, s12, 1280
    s_and_b32 s9, s9, 3
    s_lshl_b32 s9, s9, 5
    s_add_u32 s12, s12, s9
    s_lshl_b32 s9, s5, 3
    s_add_u32 s12, s12, s9
    s_lshl_b32 s9, s6, 2
    s_add_u32 s12, s12, s9
    s_add_u32 s12, s12, {FO}
    v_lshlrev_b32 v16, 7, v1
    v_mov_b32 v11, {TAG}
    """)
    if ef[0]:
        EX(0x3ff, 0)
        a(f"buffer_store_dword v11, v16, {sWS}, s12 offen sc1")
        EXALL()
    a(f"""
    s_waitcnt lgkmcnt(15)
    v_max3_f32 v8, v20, v22, v24
    v_max3_f32 v8, v8, v26, v28
    v_max3_f32 v8, v8, v30, v32
    v_max_f32 v8, v8, v34
    """)
    for w in range(8):
        a(f"v_sub_f32 v{20+2*w}, v{20+2*w}, v8")
    for w in range(8):
        a(f"v_mul_f32 v{20+2*w}, {hex(LOG2E)}, v{20+2*w}")
    for w in range(8):
        a(f"v_exp_f32 v{20+2*w}, v{20+2*w}")
    a("s_waitcnt lgkmcnt(0)")
    for w in range(8):
        a(f"v_add_f32 v{64+2*w}, v{64+2*w}, v{65+2*w}")
    a("v_mul_f32 v12, v20, v64\nv_mul_f32 v9, v20, v21")
    for w in range(1, 8):
        a(f"v_fmac_f32 v12, v{20+2*w}, v{64+2*w}\nv_fmac_f32 v9, v{20+2*w}, v{21+2*w}")
    a(f"v_mov_b32 v10, 0\nv_mov_b32 v11, {TAG}")
    quad_gather(12, 12)
    EX(0x11111111)
    a(f"buffer_store_dwordx4 v[12:15], v7, {sWS}, s8 offen sc1")
    EX(1, 0)
    a(f"buffer_store_dwordx4 v[8:11], v7, {sWS}, s8 offen offset:256 sc1")
    if not ef[0]:
        EX(0x3ff, 0)
        a(f"buffer_store_dword v11, v16, {sWS}, s12 offen sc1")
    EXALL()
    TS(8)
    a("L_t_nos1:")
    N1 = 240 - 2 * N2
    a(f"""
    ds_read_b32 v18, v17 offset:24
    s_and_b32 s8, s3, 3               ; w4
    s_cmp_lt_u32 s3, 4
    s_cselect_b32 s26, 0, {N1}
    s_cselect_b32 s27, {L_WOB}, {L_WO}
    s_cselect_b32 s15, {L_WRB - L_WR}, 0
    s_add_u32 s15, s15, {L_WR}
    s_add_u32 s26, s26, {N2}
    s_waitcnt lgkmcnt(0)
    v_readfirstlane_b32 s37, v18      ; ticket
    s_barrier
    """)
    srd(56, 24, 7864320)
    a(f"""
    s_sub_u32 s37, s37, 1
    s_cmp_ge_u32 s37, {N2 + N1}
    s_cselect_b32 s101, 1, 0
    s_add_u32 s35, s37, {N2}
    s_cmp_lt_u32 s37, {N2}
    s_cselect_b32 s36, s37, s35
    s_cmp_lt_u32 s3, 4
    s_cselect_b32 s35, s35, s36       ; unit
    s_mov_b32 s34, 0
    s_cmp_ge_u32 s37, s26
    s_cbranch_scc1 L_t_nowo
    s_mov_b32 s34, 1
    s_mul_i32 s9, s35, 6554
    s_lshr_b32 s9, s9, 16             ; ob
    s_mul_i32 s10, s9, 10
    s_sub_u32 s10, s35, s10           ; oc
    s_lshl_b32 s11, s9, 2
    s_add_u32 s11, s11, s8
    s_mul_i32 s68, s11, {64*1280}
    s_lshl_b32 s12, s10, 7
    s_add_u32 s68, s68, s12
    s_lshl_b32 s12, s8, 13
    s_add_u32 s27, s27, s12
    {'s_cmp_ge_u32 s3, 4' if early else ''}
    {'s_cbranch_scc1 L_t_nowo' if early else ''}
    """)
    for i in range(8):
        a(f"s_add_u32 m0, s27, {i*1024}")
        a(f"buffer_load_dwordx4 v59, {sA}, s68 offen nt lds")
        if i < 7: a("s_add_u32 s68, s68, 10240")
    a("L_t_nowo:")
    a("s_barrier")
    a("s_cmp_ge_u32 s3, 4\ns_cbranch_scc1 L_t_now1")
    a("s_cmp_ge_u32 s2, 240\ns_cbranch_scc1 L_t_now1")
    if w1d: a(f"s_cmp_eq_u32 s101, 0\ns_cbranch_scc1 L_t_now1d\ns_sleep {w1d}\nL_t_now1d:")
    srd(60, 28, 1966080)
    srd(64, 30, 1966080)
    a("s_lshl_b32 s12, s3, 11")
    for i in range(2):
        a(f"s_add_u32 m0, s12, {L_W1 + i*1024}\nbuffer_load_dwordx4 v60, {sB}, s69 offen nt lds")
        a(f"s_add_u32 m0, s12, {L_W1 + 8192 + i*1024}\nbuffer_load_dwordx4 v60, {sC}, s69 offen nt lds")
        if i < 1: a(f"s_add_u32 s69, s69, {4*3072}")
    a(f"s_cmp_lt_u32 s2, {S2_0}\ns_cbranch_scc1 L_t_now1")
    a("s_cmp_eq_u32 s101, 0\ns_cbranch_scc1 L_t_now1")
    srd(56, 32, 1966080)
    for i in range(5):
        a(f"s_add_u32 m0, s71, {L_WD + i*1024}\nbuffer_load_dwordx4 v62, {sA}, s70 offen nt lds")
        if i < 4: a("s_add_u32 s70, s70, 1024")
    a("L_t_now1:")
    def g23():
        lp = a.label("L_g23")
        a(f"""
        v_lshrrev_b32 v6, 2, v4         ; r / j2
        v_and_b32 v7, 3, v4             ; c / b
        v_lshl_add_u32 v16, v5, 3, v6   ; 8g + r
        v_lshlrev_b32 v16, 8, v16
        v_lshl_add_u32 v16, v7, 3, v16
        s_lshl_b32 s12, s3, 5
        s_add_u32 s12, s12, {L_W1}
        v_add_u32 v16, s12, v16
        v_and_b32 v19, 7, v4
        v_lshlrev_b32 v19, 6, v19
        v_lshl_add_u32 v19, v5, 4, v19
        v_add_u32 v19, {L_SA}, v19
        ds_read_b128 v[188:191], v19
        v_lshlrev_b32 v185, 7, v7
        v_lshl_add_u32 v185, v5, 5, v185
        v_lshl_add_u32 v185, v6, 3, v185
        v_add_u32 v19, {L_CC}, v185
        ds_read_b64 v[176:177], v19              ; ga
        ds_read_b64 v[178:179], v19 offset:512   ; cb1
        ds_read_b64 v[180:181], v19 offset:1024  ; x
        v_add_u32 v186, {L_AR}, v185
        s_lshl_b32 s12, s99, 3
        s_add_u32 s12, s12, s3
        s_mul_i32 s12, s12, 20
        s_add_u32 s12, s12, s100
        s_lshl_b32 s66, s12, 10
        s_add_u32 s66, s66, {CMS}
        s_lshl_b32 s60, s12, 9
        s_add_u32 s60, s60, {CM}
        s_lshl_b32 s61, s12, 6
        s_add_u32 s61, s61, {CST}
        v_lshlrev_b32 v182, 4, v1
        v_add_u32 v192, s60, v182
        v_and_b32 v193, 3, v1
        v_lshlrev_b32 v193, 4, v193
        v_add_u32 v193, s61, v193
        v_cndmask_b32 v192, v192, v193, {mHI}
        s_lshr_b32 s62, s100, 1
        s_mul_i32 s62, s62, 24
        s_mul_i32 s12, s3, 6
        s_add_u32 s62, s62, s12
        s_lshl_b32 s62, s62, 10
        s_and_b32 s12, s100, 1
        s_lshl_b32 s12, s12, 9
        s_add_u32 s62, s62, s12
        s_add_u32 s62, s62, {AM}
        s_add_u32 s63, s62, 4096
        v_lshrrev_b32 v183, 5, v1
        v_and_b32 v19, 31, v1
        v_lshlrev_b32 v184, 10, v183
        v_lshl_add_u32 v184, v19, 4, v184
        v_lshlrev_b32 v183, 9, v183
        v_lshl_add_u32 v183, v19, 2, v183
        s_lshl_b32 s12, s3, 10
        s_add_u32 s12, s12, {L_AR}
        v_add_u32 v183, s12, v183
        s_lshl_b32 s64, s2, 8
        s_lshl_b32 s12, s3, 6
        s_add_u32 s64, s64, s12
        s_add_u32 s64, s64, {FA}
        s_mov_b32 s65, 0
        v_mov_b32 v187, v16
        """)
    def g23b():
        lp = a.label("L_g23")
        a(f"""
        {lp}:
        ds_read_b32 v19, v17 offset:40
        ds_read_b64_tr_b16 v[168:169], v187
        ds_read_b64_tr_b16 v[170:171], v187 offset:1024
        ds_read_b64_tr_b16 v[172:173], v187 offset:8192
        ds_read_b64_tr_b16 v[174:175], v187 offset:9216
        s_waitcnt lgkmcnt(0)
        v_cmp_gt_u32 vcc, 4, v19
        s_cbranch_vccz {lp}_ok
        s_sleep 1
        s_sub_u32 s84, s84, 1
        s_cmp_lg_u32 s84, 0
        s_cbranch_scc1 {lp}
        {lp}_ok:
        v_mfma_f32_16x16x32_bf16 v[24:27], v[188:191], v[168:171], 0
        v_mfma_f32_16x16x32_bf16 v[28:31], v[188:191], v[172:175], 0
        """)
        for v in range(4):
            a(f"v_cndmask_b32 v{24+v}, v{24+v}, v{28+v}, {mHI}")
        pack4(24, 24, 25, 26, 27)
        a(f"buffer_store_dwordx4 v[24:27], v182, {sWS}, s66 offen sc1")
    def w1sig():
        lab = a.label("L_w1s")
        a(f"s_cmp_ge_u32 s3, 4\ns_cbranch_scc1 {lab}\nv_mov_b32 v121, 1")
        EX(1, 0)
        a("ds_add_u32 v17, v121 offset:40")
        EXALL()
        a(f"{lab}:")
    g23()
    a(f"s_cmp_eq_u32 s34, 1\ns_cbranch_scc1 L_wo")
    a("s_waitcnt vmcnt(0)")
    w1sig()
    a("s_branch L_wo_done")

    a("L_wo:")
    a(f"""
    v_lshrrev_b32 v6, 2, v4
    v_and_b32 v7, 3, v4
    v_lshl_add_u32 v6, v5, 2, v6   ; 4g + r
    v_lshlrev_b32 v6, 7, v6
    v_lshl_add_u32 v6, v7, 3, v6
    v_add_u32 v6, s27, v6
    v_and_b32 v12, 7, v4           ; s + 2b
    v_lshrrev_b32 v7, 3, v4        ; hi
    v_mul_u32_u24 v9, {96*384}, v12
    v_lshl_add_u32 v8, v7, 6, v9
    v_lshl_add_u32 v8, v5, 4, v8   ; + hi*64 + g*16
    s_mul_i32 s11, s11, 384
    s_add_u32 s11, s11, {OPX}
    v_lshrrev_b32 v10, 1, v5
    v_lshlrev_b32 v10, 10, v10
    v_lshl_add_u32 v10, v4, 4, v10
    v_and_b32 v11, 1, v5
    v_lshl_add_u32 v10, v11, 3, v10
    s_lshl_b32 s13, s8, 11
    s_add_u32 s13, s13, s15
    v_add_u32 v10, s13, v10
    v_lshlrev_b32 v13, 2, v1
    s_lshl_b32 s13, s8, 8
    s_add_u32 s12, s13, s15
    v_add_u32 v14, s12, v13
    ; FA16 flag address: consumers ksl = 2oc + (l&1), fsl = l>>1 ; wv = ob/6 ; idx = (ob%6)*4 + w4
    s_lshl_b32 s36, s10, 9
    s_mul_i32 s12, s9, 43
    s_lshr_b32 s12, s12, 8         ; ob/6
    s_mul_i32 s37, s12, {64 - 24}
    s_lshl_b32 s12, s9, 2
    s_add_u32 s37, s37, s12        ; wv*64 + (ob%6)*4
    s_add_u32 s36, s36, s37
    s_add_u32 s36, s36, {FA}
    v_lshrrev_b32 v15, 1, v1
    v_mul_u32_u24 v15, {20*256}, v15
    v_and_b32 v16, 1, v1
    v_lshl_add_u32 v15, v16, 8, v15
    v_mov_b32 v16, {TAG}
    s_lshr_b32 s12, s3, 2
    s_lshl_b32 s12, s12, 2
    s_add_u32 s12, s12, {L_CNT + 32}
    v_mov_b32 v18, s12
    v_mov_b32 v19, 1
    s_mul_i32 s10, s10, 24
    s_add_u32 s10, s10, s9
    s_lshl_b32 s10, s10, 10
    s_add_u32 s10, s10, s13
    s_add_u32 s10, s10, {AM}
    s_lshl_b32 s9, s35, 7
    s_lshl_b32 s12, s8, 5
    s_add_u32 s9, s9, s12
    s_add_u32 s9, s9, {FO}
    """)
    fpoll("L_wo_sp", "s9", 8, 8, 16, sleep=intv[0])
    a("L_wo_poll:")
    a(f"buffer_load_dwordx4 v[96:99], v8, {sWS}, s11 offen sc1")
    a(f"buffer_load_dwordx4 v[100:103], v8, {sWS}, s11 offen offset:128 sc1")
    a(f"buffer_load_dwordx4 v[104:107], v9, {sWS}, s11 offen offset:256 sc1")
    if wdpos == 1:
        a(f"s_cmp_eq_u32 s65, 1\ns_cbranch_scc1 L_wdl1")
        a(f"s_cmp_lt_u32 s3, 4\ns_cbranch_scc1 L_wdl1")
        a(f"s_cmp_lt_u32 s2, {S2_0}\ns_cbranch_scc1 L_wdl1")
        a(f"s_cmp_ge_u32 s2, 240\ns_cbranch_scc1 L_wdl1")
        a("s_mov_b32 s65, 1")
        srd(56, 32, 1966080)
        for i in range(5):
            a(f"s_add_u32 m0, s71, {L_WD + i*1024}\nbuffer_load_dwordx4 v62, {sA}, s70 offen nt lds")
            if i < 4: a("s_add_u32 s70, s70, 1024")
        a("s_waitcnt vmcnt(8)")
        for t in range(2):
            for nt in range(4):
                r = 64 + (t * 4 + nt) * 4
                a(f"ds_read_b64_tr_b16 v[{r}:{r+1}], v6 offset:{t*2048 + nt*32}")
                a(f"ds_read_b64_tr_b16 v[{r+2}:{r+3}], v6 offset:{t*2048 + nt*32 + 4096}")
        a("s_waitcnt vmcnt(5)\ns_branch L_wdl1c")
        a("L_wdl1:")
    a("s_waitcnt vmcnt(3)")
    TS(13)
    for t in range(2):
        for nt in range(4):
            r = 64 + (t * 4 + nt) * 4
            a(f"ds_read_b64_tr_b16 v[{r}:{r+1}], v6 offset:{t*2048 + nt*32}")
            a(f"ds_read_b64_tr_b16 v[{r+2}:{r+3}], v6 offset:{t*2048 + nt*32 + 4096}")
    a("s_waitcnt vmcnt(0)")
    if wdpos == 1: a("L_wdl1c:")
    chk([99, 103, 107], 11, "L_wo_poll", sleep=intv[0])
    TS(3)
    EX(1, 0)
    a("ds_add_rtn_u32 v120, v18, v19 offset:16")
    EXALL()
    def aflag():
        lab = a.label("L_af")
        a(f"""
        s_waitcnt lgkmcnt(0)
        v_readfirstlane_b32 s12, v120
        s_cmp_eq_u32 s12, 3
        s_cbranch_scc0 {lab}
        """)
        EX(0xffffff, 0)
        a(f"buffer_store_dword v16, v15, {sWS}, s36 offen sc1")
        EXALL()
        a(f"{lab}:")
    if ef[1] == 1: aflag()
    a(f"""
    v_mov_b32_dpp v106, v104 quad_perm:[1,0,3,2] row_mask:0xf bank_mask:0xf
    v_mov_b32_dpp v107, v105 quad_perm:[1,0,3,2] row_mask:0xf bank_mask:0xf
    v_max_f32 v12, v104, v106
    v_sub_f32 v104, v104, v12
    v_sub_f32 v106, v106, v12
    v_mul_f32 v104, {hex(LOG2E)}, v104
    v_mul_f32 v106, {hex(LOG2E)}, v106
    v_exp_f32 v104, v104
    v_exp_f32 v106, v106
    """)
    unpack4(96); unpack4(100)
    a(f"""
    v_mul_f32 v105, v105, v104
    v_fmac_f32 v105, v107, v106
    v_rcp_f32 v105, v105
    s_nop 0
    v_mul_f32 v104, v104, v105
    """)
    for i in range(8):
        a(f"v_mul_f32 v{96+i}, v{96+i}, v104")
    for i in range(8):
        a(f"v_add_f32_dpp v{96+i}, v{96+i}, v{96+i} quad_perm:[1,0,3,2] row_mask:0xf bank_mask:0xf")
    for i in range(4):
        a(f"v_cvt_pk_bf16_f32 v{108+i}, v{96+2*i}, v{97+2*i}")
    if ef[1] == 2: aflag()
    a("s_waitcnt lgkmcnt(0)")
    for nt in range(4):
        for t in range(2):
            Dd = 20 + (nt * 2 + t) * 4
            rb = 64 + (t * 4 + nt) * 4
            a(f"v_mfma_f32_16x16x32_bf16 v[{Dd}:{Dd+3}], v[108:111], v[{rb}:{rb+3}], 0")
    for nt in range(4):
        Dd = 20 + nt * 8
        a(f"v_cndmask_b32 v{112+2*nt}, v{Dd}, v{Dd+4}, {mHI}")
        a(f"v_cndmask_b32 v{113+2*nt}, v{Dd+2}, v{Dd+6}, {mHI}")
        a(f"ds_write_b64 v10, v[{112+2*nt}:{113+2*nt}] offset:{nt*256}")
    if ef[1] == 3: aflag()
    EX(1, 0)
    a("ds_add_u32 v18, v19")
    EXALL()
    a(f"""
    L_wo_gs:
    ds_read_b32 v11, v18
    """)
    for i in range(8):
        a(f"ds_read_b32 v{20+i}, v14 offset:{i*1024}")
    a(f"""
    s_waitcnt lgkmcnt(8)
    v_cmp_gt_u32 vcc, 4, v11
    s_cbranch_vccz L_wo_gs_ok
    s_sub_u32 s84, s84, 1
    s_cmp_lg_u32 s84, 0
    s_cbranch_scc1 L_wo_gs
    L_wo_gs_ok:
    """)
    a("s_waitcnt lgkmcnt(0)")
    a("""
    v_add_f32 v20, v20, v21
    v_add_f32 v22, v22, v23
    v_add_f32 v24, v24, v25
    v_add_f32 v26, v26, v27
    v_add_f32 v20, v20, v22
    v_add_f32 v24, v24, v26
    v_add_f32 v20, v20, v24
    """)
    quad_gather(20, 20)
    EX(0x11111111)
    a(f"buffer_store_dwordx4 v[20:23], v13, {sWS}, s10 offen sc1")
    EXALL()
    if ef[1] == 0: aflag()

    TS(10)
    w1sig()
    a("L_wo_done:")
    a("s_cmp_ge_u32 s2, 240\ns_cbranch_scc1 L_end")
    def wd_late(skip):
        a(f"s_cmp_lt_u32 s3, 4\ns_cbranch_scc1 {skip}")
        a(f"s_cmp_lt_u32 s2, {S2_0}\ns_cbranch_scc1 {skip}")
        a(f"s_cmp_ge_u32 s2, 240\ns_cbranch_scc1 {skip}")
        a(f"s_cmp_eq_u32 s101, 1\ns_cbranch_scc1 {skip}")
        srd(56, 32, 1966080)
        for i in range(5):
            a(f"s_add_u32 m0, s71, {L_WD + i*1024}\nbuffer_load_dwordx4 v62, {sA}, s70 offen nt lds")
            if i < 4: a("s_add_u32 s70, s70, 1024")
        a(f"{skip}:")
    if wdpos == 0: wd_late("L_wdl0")
    g23b()
    a("s_cmp_ge_u32 s3, 4\ns_cbranch_scc1 L_s1_b3")
    a("L_s1_g:")
    a("s_waitcnt lgkmcnt(0)")
    fpoll("L_s1_sp", "s64", 8, 6, 16, sleep=intv[1])
    a("L_s1_poll:")
    a(f"buffer_load_dwordx4 v[96:99], v184, {sWS}, s62 offen sc1")
    a(f"buffer_load_dwordx4 v[100:103], v184, {sWS}, s62 offen offset:2048 sc1")
    a(f"buffer_load_dwordx4 v[104:107], v184, {sWS}, s63 offen sc1")
    a("s_waitcnt vmcnt(0)")
    chk([99, 103, 107], 12, "L_s1_poll", sleep=intv[1])
    TS(9)
    unpack4(96); unpack4(100); unpack4(104)
    for v in range(4):
        a(f"v_add_f32 v{96+v}, v{96+v}, v{100+v}")
    for v in range(4):
        a(f"v_add_f32 v{96+v}, v{96+v}, v{104+v}")
    for v in range(4):
        a(f"ds_write_b32 v183, v{96+v} offset:{v*128}")
    a("L_s1_b3:")
    a(f"""
    s_sub_u32 s26, s2, {S2_0}
    s_lshl_b32 s26, s26, 1
    s_add_u32 s26, s26, s3
    s_sub_u32 s26, s26, 6
    s_mul_i32 s26, s26, 10240
    s_add_u32 s26, s26, {CMS}
    s_cmp_ge_u32 s3, 6
    s_cselect_b32 s27, 1, 0
    s_cmp_ge_u32 s2, {S2_0}
    s_cselect_b32 s27, s27, 0
    v_mov_b32 v8, v182
    v_mov_b32 v18, v185
    v_lshrrev_b32 v6, 2, v4
    v_and_b32 v7, 3, v4
    s_waitcnt lgkmcnt(0)
    s_barrier
    """)
    TS5(6)
    for i in range(8):
        a(f"ds_read_b64 v[{96+2*i}:{97+2*i}], v186 offset:{i*512}")
    a("""
    s_cmp_eq_u32 s27, 0
    s_cbranch_scc1 L_s1_nost
    s_mov_b32 s12, s26
    """)
    for i in range(10):
        a(f"buffer_load_dwordx4 v[{128+4*i}:{131+4*i}], v8, {sWS}, s12 offen offset:{(i%4)*1024} sc1")
        if i % 4 == 3: a("s_add_u32 s12, s12, 4096")
    a("L_s1_nost:")
    a("s_waitcnt lgkmcnt(0)")
    for (x, y) in ((0, 1), (2, 3), (4, 5), (6, 7), (0, 2), (4, 6), (0, 4)):
        a(f"v_pk_add_f32 v[{96+2*x}:{97+2*x}], v[{96+2*x}:{97+2*x}], v[{96+2*y}:{97+2*y}]")
    rnd2(96, 97, 12)
    a("v_pk_mul_f32 v[96:97], v[176:177], v[96:97]")
    rnd2(96, 97, 12)
    a("v_pk_add_f32 v[96:97], v[180:181], v[96:97]")
    rnd2(96, 97, 12)
    a(f"""
    v_pk_mul_f32 v[98:99], v[96:97], v[178:179]
    v_cvt_pk_bf16_f32 v100, v98, v99
    v_add_f32 v12, v96, v97
    v_mul_f32 v13, v96, v96
    v_mov_b32_dpp v101, v100 row_ror:12 row_mask:0xf bank_mask:0xf
    v_mov_b32_dpp v102, v100 row_ror:8 row_mask:0xf bank_mask:0xf
    v_mov_b32_dpp v103, v100 row_ror:4 row_mask:0xf bank_mask:0xf
    v_fmac_f32 v13, v97, v97
    v_mov_b32_dpp v100, v100 row_ror:4 row_mask:0xf bank_mask:0x2
    v_mov_b32_dpp v101, v101 row_ror:4 row_mask:0xf bank_mask:0x2
    v_mov_b32_dpp v102, v102 row_ror:4 row_mask:0xf bank_mask:0x2
    v_mov_b32_dpp v103, v103 row_ror:4 row_mask:0xf bank_mask:0x2
    v_mfma_f32_16x16x32_bf16 v[24:27], v[100:103], v[168:171], 0
    v_mfma_f32_16x16x32_bf16 v[28:31], v[100:103], v[172:175], 0
    """)
    red2(12, 13, 14, 15)
    for v in range(4):
        a(f"v_cndmask_b32 v{24+v}, v{24+v}, v{28+v}, {mQ1}")
    pack4(24, 24, 25, 26, 27)
    a(f"v_cndmask_b32 v24, v24, v12, {mHI}\nv_cndmask_b32 v25, v25, v13, {mHI}")
    TS5(13)
    EX(0xffffffff, 0xf)
    a(f"buffer_store_dwordx4 v[24:27], v192, {sWS}, 0 offen sc1")
    EXALL()
    TS(14)
    a(f"s_cmp_ge_u32 s2, {S2_0}\ns_cbranch_scc1 L_s2")
    a(f"s_cmp_ge_u32 s2, {NRED}\ns_cbranch_scc1 L_end")
    a(f"""
    v_add_u32 v19, {L_X1}, v18
    ds_write_b64 v19, v[96:97]
    v_and_b32 v6, 7, v1            ; n8
    v_bfe_u32 v7, v1, 3, 2         ; b
    v_lshlrev_b32 v9, 7, v7
    v_lshl_add_u32 v9, v6, 2, v9
    s_lshl_b32 s8, s99, 5
    v_add_u32 v9, s8, v9           ; b*128 + (8 fsl + n8)*4
    v_add_u32 v10, {L_X1}, v9
    v_add_u32 v9, {L_CC + 1536}, v9
    s_waitcnt lgkmcnt(0)
    ds_read_b32 v40, v10           ; x1
    ds_read_b32 v41, v9            ; gb
    s_lshl_b32 s9, s100, 2
    s_add_u32 s9, s9, s99          ; r
    s_mul_i32 s11, s9, {96*128}
    s_mul_i32 s12, s3, {12*128}
    s_add_u32 s11, s11, s12
    s_add_u32 s11, s11, {EM}
    v_mul_u32_u24 v9, 1280, v7
    v_lshl_add_u32 v9, v6, 1, v9
    s_lshl_b32 s13, s9, 4
    v_and_b32 v14, 31, v1
    v_lshlrev_b32 v14, 4, v14
    v_lshlrev_b32 v15, 7, v5
    v_lshl_add_u32 v15, v6, 4, v15
    s_lshl_b32 s12, s3, 9
    s_add_u32 s12, s12, {L_WR}
    v_add_u32 v15, s12, v15
    v_lshlrev_b32 v16, 4, v6
    v_lshl_add_u32 v16, v7, 2, v16
    v_lshrrev_b32 v17, 5, v1
    v_lshl_add_u32 v16, v17, 11, v16
    v_add_u32 v16, {L_WR}, v16
    s_lshl_b32 s10, s9, 9
    s_lshl_b32 s12, s3, 6
    s_add_u32 s10, s10, s12
    s_add_u32 s10, s10, {FE}
    """)
    srd(56, 38, 5120)
    a(f"""
    {'s_sleep %d' % pre[3] if pre[3] else ''}
    s_waitcnt lgkmcnt(0)
    """)
    fpoll("L_e_sp0", "s10", 16, 12, 16, sleep=intv[3])
    a(f"""
    L_e_poll:
    buffer_load_dwordx4 v[64:67], v8, {sWS}, s11 offen sc1
    buffer_load_dwordx4 v[68:71], v14, {sWS}, s11 offen offset:1024 sc1
    s_waitcnt vmcnt(0)
    """)
    chk([67, 71], 11, "L_e_poll", sleep=intv[3])
    TS(11)
    unpack4(64); unpack4(68)
    EX(0xffffffff, 0)
    for v in range(4): a(f"v_add_f32 v{64+v}, v{64+v}, v{68+v}")
    EXALL()
    for v in range(4): ror(64 + v, 8)
    a(f"""
    ds_write_b128 v15, v[64:67]
    s_waitcnt lgkmcnt(0)
    s_barrier
    s_cmp_eq_u32 s3, 0
    s_cbranch_scc0 L_end
    """)
    for i in range(16):
        a(f"ds_read_b32 v{64+i}, v16 offset:{i*128}")
    a("s_waitcnt lgkmcnt(0)")
    n = 16
    while n > 1:
        h = n // 2
        for i in range(h): a(f"v_add_f32 v{64+i}, v{64+i}, v{64+h+i}")
        n = h
    a("v_mov_b32 v13, v64\nv_permlane32_swap_b32 v13, v64\nv_add_f32 v13, v13, v64")
    rnd1(13)
    a("s_waitcnt lgkmcnt(0)\nv_mul_f32 v13, v41, v13")
    rnd1(13)
    a(f"""
    v_add_f32 v13, v40, v13
    v_cvt_pk_bf16_f32 v13, v13, v13
    """)
    EX(0xffffffff, 0)
    a(f"buffer_store_short v13, v9, {sA}, s13 offen")
    EXALL()
    TS(12)
    a(f"""
    s_cmp_eq_u32 s2, 0
    s_cbranch_scc0 L_end
    v_mov_b32 v8, {TAG}
    """)
    EX(1, 0)
    a(f"buffer_store_dword v8, v1, {sWS}, 0 offen sc1")
    EXALL()
    a("s_branch L_end")

    a("L_s2:")
    a(f"""
    s_sub_u32 s8, s2, {S2_0}         ; fs
    s_mul_i32 s9, s8, 20
    v_lshl_add_u32 v17, v5, 2, v6    ; 4g + r
    v_mul_u32_u24 v17, 1280, v17
    v_lshl_add_u32 v17, v7, 3, v17
    s_mul_i32 s11, s3, 160
    s_add_u32 s11, s11, {L_WD}
    v_add_u32 v17, s11, v17
    s_cmp_ge_u32 s3, 6
    s_cbranch_scc1 L_s2_w13
    s_waitcnt vmcnt(1)
    L_s2_w13:
    s_waitcnt vmcnt(11)
    s_barrier
    ds_read_b64_tr_b16 v[84:85], v17
    ds_read_b64_tr_b16 v[86:87], v17 offset:32
    ds_read_b64_tr_b16 v[88:89], v17 offset:64
    ds_read_b64_tr_b16 v[90:91], v17 offset:96
    ds_read_b64_tr_b16 v[92:93], v17 offset:128
    v_lshlrev_b32 v12, 2, v1
    v_add_u32 v12, {L_CR}, v12
    v_and_b32 v18, 3, v1
    v_lshlrev_b32 v18, 3, v18
    v_add_u32 v18, {L_SS}, v18
    v_lshrrev_b32 v13, 3, v4
    v_mul_u32_u24 v13, {96*128}, v13
    v_and_b32 v14, 7, v4
    v_lshl_add_u32 v13, v14, 4, v13
    v_mul_u32_u24 v14, {2*96*128}, v5
    v_add_u32 v94, v13, v14          ; + q4 tile
    s_mul_i32 s33, s3, {10*96*128}
    s_lshl_b32 s13, s8, 7
    s_add_u32 s33, s33, s13
    s_add_u32 s33, s33, {EM}
    s_mul_i32 s13, s8, 43
    s_lshr_b32 s13, s13, 9           ; fs/12
    s_mul_i32 s32, s13, {64 - 48}
    s_lshl_b32 s13, s8, 2
    s_add_u32 s32, s32, s13          ; (fs/12)*64 + (fs%12)*4
    s_mul_i32 s13, s3, 5120
    s_add_u32 s32, s32, s13
    s_add_u32 s32, s32, {FE}
    v_lshlrev_b32 v16, 9, v1
    s_cmp_ge_u32 s3, 6
    s_cbranch_scc1 L_s2_static
    s_cmp_eq_u32 s3, 5
    s_cbranch_scc1 L_s2_stats
    s_lshl_b32 s10, s3, 2
    s_add_u32 s10, s10, s9
    s_lshl_b32 s10, s10, 9
    s_add_u32 s10, s10, {CM}
    s_lshl_b32 s11, s3, 9
    s_add_u32 s11, s11, {L_CR}
    v_add_u32 v9, s11, v8
    {'s_sleep %d' % pre[2] if pre[2] else ''}
    L_s2_poll:
    buffer_load_dwordx4 v[96:99], v8, {sWS}, s10 offen sc1
    buffer_load_dwordx4 v[100:103], v8, {sWS}, s10 offen offset:1024 sc1
    s_waitcnt vmcnt(0)
    """)
    chk([99, 103], 10, "L_s2_poll", sleep=intv[2])
    TS(11)
    unpack4(96); unpack4(100)
    for v in range(4): a(f"v_add_f32 v{96+v}, v{96+v}, v{100+v}")
    for v in range(4): a(f"v_mov_b32 v{100+v}, v{96+v}")
    for v in range(4): a(f"v_permlane32_swap_b32 v{96+v}, v{100+v}")
    for v in range(4): a(f"v_add_f32 v{96+v}, v{96+v}, v{100+v}")
    EX(0xffffffff, 0)
    a("ds_write_b128 v9, v[96:99]")
    EXALL()
    a("s_branch L_s2_b4")
    a("L_s2_static:")
    if nocms: a("s_branch L_s2_b4")
    a(f"""
    s_sub_u32 s10, s3, 6
    s_lshl_b32 s10, s10, 10
    s_add_u32 s10, s10, {L_CR + 2560}
    v_add_u32 v9, s10, v8
    s_branch L_s2_schk
    L_s2_spoll:
    s_mov_b32 s12, s26
    """)
    for i in range(10):
        a(f"buffer_load_dwordx4 v[{128+4*i}:{131+4*i}], v8, {sWS}, s12 offen offset:{(i%4)*1024} sc1")
        if i % 4 == 3: a("s_add_u32 s12, s12, 4096")
    a("L_s2_schk:")
    a("s_waitcnt vmcnt(0)")
    chk([131 + 4 * i for i in range(10)], 10, "L_s2_spoll", sleep=1)
    TS(11)
    for i in range(10): unpack4(128 + 4 * i)
    for i in range(1, 10):
        for v in range(4): a(f"v_add_f32 v{128+v}, v{128+v}, v{128+4*i+v}")
    a("ds_write_b128 v9, v[128:131]")
    a("s_branch L_s2_b4")
    a("L_s2_stats:")
    a(f"""
    s_lshl_b32 s11, s9, 6
    s_add_u32 s11, s11, {CST}
    v_and_b32 v9, 15, v1
    v_lshlrev_b32 v9, 4, v9
    {'s_sleep %d' % pre[2] if pre[2] else ''}
    s_mov_b32 s16, 0xffff0000
    s_mov_b32 s17, -1
    L_s2_tpoll:
    buffer_load_dwordx4 v[96:99], v8, {sWS}, s11 offen sc1
    buffer_load_dwordx4 v[100:103], v9, {sWS}, s11 offen offset:1024 sc1
    s_waitcnt vmcnt(0)
    """)
    chk([99, 103], 10, "L_s2_tpoll", sleep=intv[2])
    TS(11)
    a(f"""
    v_cndmask_b32 v14, v100, 0, s[16:17]
    v_cndmask_b32 v15, v101, 0, s[16:17]
    v_add_f32 v14, v14, v96
    v_add_f32 v15, v15, v97
    """)
    red2(14, 15, 98, 99)
    a(f"""
    v_mul_f32 v14, {hex(0x3ACCCCCD)}, v14
    v_mul_f32 v15, {hex(0x3ACCCCCD)}, v15
    v_fma_f32 v15, -v14, v14, v15
    v_max_f32 v15, 0, v15
    """)
    rnd2(14, 15, 19)
    a(f"v_add_f32 v15, {hex(0x3727C5AC)}, v15")
    rnd1(15)
    a("v_sqrt_f32 v15, v15")
    rnd1(15)
    a("v_rcp_f32 v15, v15")
    a("s_nop 0\nds_write_b64 v18, v[14:15]")
    a("L_s2_b4:")
    a(f"v_mov_b32 v19, {TAG}")
    TS5(1)
    a("s_waitcnt lgkmcnt(0)\ns_barrier")
    TS5(2)
    def eflag():
        EX(0x3ff, 0)
        a(f"buffer_store_dword v19, v16, {sWS}, s32 offen sc1")
        EXALL()
    if ef[2] == 1: eflag()
    for i in range(5):
        a(f"ds_read_b32 v{24+i}, v12 offset:{i*512}")
        a(f"ds_read_b32 v{32+i}, v12 offset:{i*512+256}")
    rd = [f"ds_read_b32 v{40+4*j+ty}, v12 offset:{2560 + j*1024 + ty*256}" for j in range(2) for ty in range(4)] + ["ds_read_b64 v[14:15], v18"]
    for x in rd[:5]: a(x)
    a("s_waitcnt lgkmcnt(5)")
    for x in rd[5:]: a(x)
    a("""
    v_add_f32 v24, v24, v25
    v_add_f32 v26, v26, v27
    v_add_f32 v32, v32, v33
    v_add_f32 v34, v34, v35
    v_add_f32 v24, v24, v26
    v_add_f32 v32, v32, v34
    v_add_f32 v24, v24, v28
    v_add_f32 v32, v32, v36
    s_waitcnt lgkmcnt(0)
    v_add_f32 v40, v40, v44
    v_add_f32 v41, v41, v45
    v_add_f32 v42, v42, v46
    v_add_f32 v43, v43, v47
    v_fma_f32 v24, -v14, v40, v24
    v_fma_f32 v32, -v14, v42, v32
    v_fma_f32 v24, v24, v15, v41
    v_fma_f32 v32, v32, v15, v43
    """)
    TS5(4)
    if ef[2] == 2: eflag()
    rnd2(24, 32, 19)
    a(f"""
    v_cmp_lt_f32 vcc, 0, v24
    v_cndmask_b32 v25, 0, 1.0, vcc
    v_mul_f32 v24, v24, v25
    v_mul_f32 v24, v24, v32
    v_mov_b32_dpp v25, v24 row_ror:12 row_mask:0xf bank_mask:0xf
    v_mov_b32_dpp v26, v24 row_ror:8 row_mask:0xf bank_mask:0xf
    v_mov_b32_dpp v27, v24 row_ror:4 row_mask:0xf bank_mask:0xf
    v_cvt_pk_bf16_f32 v28, v24, v25
    v_cvt_pk_bf16_f32 v29, v26, v27
    s_add_u32 s13, s33, {4*2*96*128}
    s_nop 0
    v_mov_b32_dpp v28, v28 row_ror:4 row_mask:0xf bank_mask:0x2
    v_mov_b32_dpp v29, v29 row_ror:4 row_mask:0xf bank_mask:0x2
    s_nop 0
    v_mov_b32_dpp v28, v28 row_ror:8 row_mask:0xf bank_mask:0xc
    v_mov_b32_dpp v29, v29 row_ror:8 row_mask:0xf bank_mask:0xc
    """)
    for i in range(5):
        a(f"v_mfma_f32_16x16x16_bf16 v[{32+4*i}:{35+4*i}], v[28:29], v[{84+2*i}:{85+2*i}], 0")
    TS5(5)
    sel_q4([32, 33, 34, 35], [[32 + 4 * q + v for v in range(4)] for q in range(4)])
    pack4(32, 32, 33, 34, 35)
    a(f"buffer_store_dwordx4 v[32:35], v94, {sWS}, s33 offen sc1")
    pack4(48, 48, 49, 50, 51)
    EX(0xffff, 0)
    a(f"buffer_store_dwordx4 v[48:51], v13, {sWS}, s13 offen sc1")
    if not ef[2]:
        EX(0x3ff, 0)
        a(f"buffer_store_dword v35, v16, {sWS}, s32 offen sc1")
    EXALL()
    TS(12)

    a("L_end:")
    if ts == 3:
        TS(15)
        srd(68, 40, 256)
        a(f"""
        v_readlane_b32 s8, v63, 0
        s_not_b32 s8, s8
        s_nop 3
        v_writelane_b32 v63, s8, 3
        v_lshlrev_b32 v6, 2, v1
        s_mov_b64 exec, 0xffff
        buffer_atomic_umax v63, v6, {sTS}, 0 offen
        """)
    elif ts:
        TS(15)
        srd(68, 42, 0x4000000)
        a(f"""
        s_lshl_b32 s8, s2, 3
        s_add_u32 s8, s8, s3
        s_lshl_b32 s8, s8, 6
        s_add_u32 s8, s8, {TSOFF}
        v_lshlrev_b32 v6, 2, v1
        s_mov_b64 exec, 0xffff
        buffer_store_dword v63, v6, {sTS}, s8 offen
        """)
    a("L_exit:\ns_endpgm")
    a.footer(256, 102)
    nn = a.write(out)
    return nn

if __name__ == "__main__":
    K = dict(NV1=5, D=8, D1=3, DL=3, NL=4, N2=60, intv=(0, 2, 0, 0), NWQ0=2, ef=(1, 3, 1, 1, 2))
    gen("k44.s", pre=(0, 0, 4, 18), wdpos=1, **K)
    gen("d_00.s", ts=1, pre=(0, 0, 0, 18), wdpos=0, w1d=0, **K)
    gen("d_04.s", ts=1, pre=(0, 0, 4, 18), wdpos=0, w1d=0, **K)
    gen("d_14.s", ts=1, pre=(0, 0, 4, 18), wdpos=1, **K)
    gen("d_18.s", ts=1, pre=(0, 0, 8, 18), wdpos=1, **K)
    gen("d_10.s", ts=1, pre=(0, 0, 0, 18), wdpos=1, **K)
```

```python
import gen
hdr = open('adaLN_cond__sliding_block_cached__glu_gated_reglu__decode.s.ref').read().split("\n")
comments = [l for l in hdr if l.startswith(";") and "@launch" not in l and "Override" not in l and "grid=ceil" not in l]
comments += [
 "; Single persistent launch, one 8-wave workgroup per CU (256 WGs).  Generated by the author's own script.",
 ";  wave 0: adaLN mod GEMV -> q GEMV (two tagged hand-offs), waves 1-7: stream K/V (nt) into registers/LDS.",
 ";  attention per wave via MFMA; then wo (ticket-assigned units) -> x1/LN-factored gate,up -> ReGLU, down -> out.",
 ";  hand-offs: 16-byte granules (4 x 24-bit float + launch tag = epoch word of d_ws + 1), flags polled with scalar glc loads.",
]
K = dict(NV1=5, D=8, D1=3, DL=3, NL=4, N2=45, intv=(0, 2, 0, 0), NWQ0=2, ef=(1, 3, 1, 1, 2), pre=(0, 0, 4, 18), wdpos=0)
gen.gen("adaLN_cond__sliding_block_cached__glu_gated_reglu__decode.s", comments=comments, **K)
gen.gen("final.s", comments=comments, **K)
```
